```python
import torch

def _softmax(x, axis=-1):
    return torch.softmax(x, dim=axis)
def _gelu(x):
    return torch.nn.functional.gelu(x, approximate="tanh")
def _silu(x):
    return torch.nn.functional.silu(x)
def _sigmoid(x):
    return torch.sigmoid(x)
def _layernorm(x, axis=-1, eps=1e-5):
    m = x.mean(dim=axis, keepdim=True)
    v = x.var(dim=axis, keepdim=True, unbiased=False)
    return (x - m) / torch.sqrt(v + eps)
def _scatter_add(tgt, idx, src, axis=0):
    return tgt.clone().index_add_(axis, idx, src)
def _segment_sum(src, seg, n):
    out = torch.zeros((n,) + src.shape[1:], dtype=src.dtype)
    return out.index_add_(0, seg, src)
def _pad(x, pw):
    flat = tuple(v for pair in reversed(pw) for v in pair)
    return torch.nn.functional.pad(x, flat)

kernel_name = 'standalone__gqa_softmax__near_ridge'

def setup_inputs():

    _w = (lambda a: (lambda t: t.to(torch.bfloat16) if t.is_floating_point() else t)(torch.as_tensor(a)))
    B, Hq, Hkv, Sq, Sk, D = 16, 32, 4, 512, 512, 128
    return {
        "q": _w((lambda *s: torch.randn(*s, dtype=torch.bfloat16) * 0.8)(B, Hq, Sq, D)),
        "k": _w((lambda *s: torch.randn(*s, dtype=torch.bfloat16) * 0.8)(B, Hkv, Sk, D)),
        "v": _w((lambda *s: torch.randn(*s, dtype=torch.bfloat16) * 0.05)(B, Hkv, Sk, D)),
    }

def reference(q, k, v):
    B, Hq, Sq, D = q.shape
    Hkv = k.shape[1]
    rep = Hq // Hkv
    k = (lambda x, n, axis: torch.repeat_interleave(x, n, dim=axis))(k, rep, axis=1)
    v = (lambda x, n, axis: torch.repeat_interleave(x, n, dim=axis))(v, rep, axis=1)
    scale = D ** -0.5
    scores = torch.einsum("bhqd,bhkd->bhqk", q, k) * scale
    p = _softmax(scores, axis=-1)
    return torch.einsum("bhqk,bhkd->bhqd", p, v)
```

```python
import struct, math
NAME = "standalone__gqa_softmax__near_ridge_kernel"

def f2u(x): return struct.unpack("<I", struct.pack("<f", x))[0]
CSCALE = f2u(math.log2(math.e) / math.sqrt(128.0))

vQoff, vVsrc, vKr0, vKr1, vVr, vKw0, vKw1 = 1, 2, 3, 4, 5, 6, 7
vR, vT = 12, 14
vTMP = 16
vLS = 28
vL = 32
vP = 48
vS = 64
vOS = 96
vO = 128
aQ, aQS, aK, aV, aONE = 0, 64, 96, 160, 224
sWV = 3
sQ, sK, sV, sO = 8, 12, 16, 20
sC, sMASK, sLO, sRNG, sFLAG = 28, 29, 30, 31, 32
sQN, sON, sVT, sKT, sM0B, sCNT = 33, 34, 35, 36, 37, 38
sT0 = 40
LDS_V = 131072

HEADER = """; Kernarg layout (48 bytes): q, k, v, out, debug, ws pointers.
; @launch grid=(256,1,1) block=(256,1,1) lds=163840
.amdgcn_target "amdgcn-amd-amdhsa--gfx950"
.text
.globl {name}
.p2align 8
.type {name},@function
{name}:
"""
FOOTER = """
.section .rodata,"a"
.p2align 6
.amdhsa_kernel {name}
  .amdhsa_next_free_vgpr 512
  .amdhsa_next_free_sgpr 64
  .amdhsa_accum_offset 256
  .amdhsa_group_segment_fixed_size 0
  .amdhsa_kernarg_size 48
  .amdhsa_user_sgpr_count 2
  .amdhsa_user_sgpr_kernarg_segment_ptr 1
  .amdhsa_system_sgpr_workgroup_id_x 1
.end_amdhsa_kernel
"""

def vr(b, n=4): return f"v[{b}:{b+n-1}]"
def ar(b, n=4): return f"a[{b}:{b+n-1}]"
def sr(b, n=4): return f"s[{b}:{b+n-1}]"

def setup(lo_exp=-24, hi_exp=32):
    lo = (127 + lo_exp) << 23; hi = (127 + hi_exp) << 23
    return f"""
    s_cmp_ge_u32 s2, 256
    s_cbranch_scc1 L_end
    s_load_dwordx4 s[4:7], s[0:1], 0          ; q, k
    s_load_dwordx4 s[24:27], s[0:1], 16       ; v, out
    v_readfirstlane_b32 s{sWV}, v0
    v_and_b32 v0, 63, v0                      ; lane
    v_and_b32 v8, 15, v0                      ; l&15
    v_lshrrev_b32 v9, 4, v0                   ; l>>4
    s_lshr_b32 s{sWV}, s{sWV}, 6
    s_and_b32 s40, s2, 7
    s_lshl_b32 s40, s40, 3
    s_lshr_b32 s41, s2, 5
    s_add_u32 s40, s40, s41
    s_bfe_u32 s41, s2, 0x20003
    s_lshl_b32 s42, s40, 20
    s_lshl_b32 s41, s41, 18
    s_add_u32 s42, s42, s41
    s_lshl_b32 s41, s{sWV}, 16
    s_add_u32 s42, s42, s41
    s_lshl_b32 s43, s40, 17
    s_lshr_b32 s44, s{sWV}, 1
    s_lshl_b32 s44, s44, 12
    s_and_b32 s45, s{sWV}, 1
    s_lshl_b32 s45, s45, 7
    s_add_u32 s44, s44, s45
    s_lshl_b32 s45, s{sWV}, 11
    v_lshlrev_b32 v{vQoff}, 8, v8
    v_lshl_add_u32 v{vQoff}, v9, 4, v{vQoff}  ; (l&15)*256 + (l>>4)*16
    v_bfe_u32 v10, v0, 2, 2
    v_and_b32 v11, 3, v0
    v_lshlrev_b32 v{vVsrc}, 8, v10
    v_lshl_add_u32 v{vVsrc}, v9, 6, v{vVsrc}
    v_lshl_add_u32 v{vVsrc}, v11, 4, v{vVsrc} ; ((l>>2)&3)*256 + (l>>4)*64 + (l&3)*16
    s_mov_b32 s{sQ+2}, 0x10000
    s_mov_b32 s{sQ+3}, 0x20000
    s_mov_b32 s{sK+3}, 0x20000
    s_mov_b32 s{sV+3}, 0x20000
    s_mov_b32 s{sO+2}, 0x10000
    s_mov_b32 s{sO+3}, 0x20000
    s_sub_u32 s{sK+2}, 0x20000, s44
    s_sub_u32 s{sV+2}, 0x20000, s45
    s_add_u32 s44, s44, s43
    s_add_u32 s46, s45, s43
    s_add_u32 s{sM0B}, s45, {LDS_V}
    s_waitcnt lgkmcnt(0)
    s_add_u32 s{sK}, s6, s44
    s_addc_u32 s{sK+1}, s7, 0
    s_add_u32 s{sQ}, s4, s42
    s_addc_u32 s{sQ+1}, s5, 0
    s_add_u32 s{sV}, s24, s46
    s_addc_u32 s{sV+1}, s25, 0
    s_add_u32 s{sO}, s26, s42
    s_addc_u32 s{sO+1}, s27, 0
""", f"""
    v_lshlrev_b32 v{vKr0}, 4, v0
    v_add_u32 v{vKr1}, 0x10000, v{vKr0}
    v_add_u32 v{vKw0}, s45, v{vKr0}
    v_add_u32 v{vKw1}, s45, v{vKr1}
    v_lshlrev_b32 v{vVr}, 10, v9
    v_lshl_add_u32 v{vVr}, v8, 4, v{vVr}
    v_add_u32 v{vVr}, {LDS_V}, v{vVr}
    v_mov_b32 v10, 0x3f803f80
    s_mov_b32 s{sC}, {CSCALE:#x}
    s_mov_b32 s{sMASK}, 0xffff0000
    s_mov_b32 s{sLO}, {lo:#x}
    s_mov_b32 s{sRNG}, {hi-lo:#x}
    s_mov_b32 s{sFLAG}, 0
    v_accvgpr_write_b32 a{aONE}, v10
    v_accvgpr_write_b32 a{aONE+1}, v10
    v_accvgpr_write_b32 a{aONE+2}, v10
    v_accvgpr_write_b32 a{aONE+3}, v10
"""

def mfma(d, a, b, c):
    return f"v_mfma_f32_16x16x32_bf16 {d}, {a}, {b}, {c}"

def fallback():
    o = []
    e = o.append
    vM, vA, vVA = 8, 9, 10
    def qk():
        for f in range(8): e(f"    ds_read_b128 {ar(aK+4*f)}, v{vA} offset:{1024*f}")
        e(f"    v_add_u32 v{vA}, 0x2000, v{vA}")
        e("    s_waitcnt lgkmcnt(0)")
        for k2 in range(2):
            for ks in range(4):
                d = vr(vS+4*k2)
                e("    " + mfma(d, ar(aK+16*k2+4*ks), ar(aQ+4*ks), d if ks else "0"))
        e("    s_nop 9")
    e("L_fb:")
    e("    s_waitcnt vmcnt(0) lgkmcnt(0)")
    e("    s_barrier")
    e(f"    s_cmp_eq_u32 s{sFLAG}, 0")
    e("    s_cbranch_scc1 L_end")
    e(f"    s_lshl_b32 s40, s{sWV}, 11")
    e(f"    s_sub_u32 s{sV}, s{sV}, s40")
    e(f"    s_subb_u32 s{sV+1}, s{sV+1}, 0")
    e(f"    s_mov_b32 s{sV+2}, 0x20000")
    e(f"    s_lshl_b32 s40, s{sWV}, 13")
    e(f"    v_add_u32 v{vVA}, s40, v{vVr}")
    e(f"    s_add_u32 s{sM0B}, s40, {LDS_V}")
    e("L_fb_blk:")
    e(f"    s_ff1_i32_b32 s40, s{sFLAG}")
    e(f"    s_bitset0_b32 s{sFLAG}, s40")
    e(f"    s_sub_u32 s40, 15, s40")
    e(f"    s_lshl_b32 s{sQN}, s40, 12")
    for ks in range(4): e(f"    buffer_load_dwordx4 {ar(aQ+4*ks)}, v{vQoff}, {sr(sQ)}, s{sQN} offen offset:{64*ks}")
    e(f"    v_mov_b32 v{vM}, 0xff800000")
    e(f"    v_mov_b32 v{vA}, v{vKr0}")
    for i in range(32): e(f"    v_mov_b32 v{vO+i}, 0")
    for i in range(4): e(f"    v_mov_b32 v{vL+i}, 0")
    e(f"    s_mov_b32 s{sCNT}, 16")
    e("    s_waitcnt vmcnt(0)")
    e("L_fb_max:")
    qk()
    for i in range(4): e(f"    v_max3_f32 v{vM}, v{vM}, v{vS+2*i}, v{vS+2*i+1}")
    e(f"    s_sub_u32 s{sCNT}, s{sCNT}, 1")
    e(f"    s_cmp_lg_u32 s{sCNT}, 0")
    e("    s_cbranch_scc1 L_fb_max")
    for sw in ("v_permlane32_swap_b32", "v_permlane16_swap_b32"):
        e(f"    v_mov_b32 v{vT}, v{vM}")
        e("    s_nop 1")
        e(f"    {sw} v{vT}, v{vM}")
        e("    s_nop 1")
        e(f"    v_max_f32 v{vM}, v{vM}, v{vT}")
    e(f"    v_mov_b32 v{vA}, v{vKr0}")
    e(f"    s_mov_b32 s{sVT}, 0")
    e("L_fb_pv:")
    for h in range(2):
        e(f"    s_add_u32 m0, s{sM0B}, {4096*h}")
        e("    s_nop 0")
        for b in range(4): e(f"    buffer_load_dwordx4 v{vVsrc}, {sr(sV)}, s{sVT} offen offset:{1024*b} lds")
        e(f"    s_add_u32 s{sVT}, s{sVT}, 4096")
    qk()
    for i in range(8): e(f"    v_sub_f32 v{vS+i}, v{vS+i}, v{vM}")
    for i in range(8): e(f"    v_exp_f32 v{vS+i}, v{vS+i}")
    e("    s_nop 0")
    for i in range(4): e(f"    v_cvt_pk_bf16_f32 v{vP+i}, v{vS+2*i}, v{vS+2*i+1}")
    e("    s_waitcnt vmcnt(0)")
    for dt in range(8):
        for h in range(2):
            e(f"    ds_read_b64_tr_b16 {ar(aV+4*dt+2*h, 2)}, v{vVA} offset:{4096*h + 256*(dt>>1) + 8*(dt&1)}")
    e("    s_waitcnt lgkmcnt(0)")
    e("    " + mfma(vr(vL), ar(aONE), vr(vP), vr(vL)))
    for dt in range(8): e("    " + mfma(vr(vO+4*dt), ar(aV+4*dt), vr(vP), vr(vO+4*dt)))
    e(f"    s_cmp_lt_u32 s{sVT}, 0x20000")
    e("    s_cbranch_scc1 L_fb_pv")
    e("    s_nop 9")
    e(f"    v_rcp_f32 v{vR}, v{vL}")
    e("    s_nop 0")
    for i in range(32): e(f"    v_mul_f32 v{vO+i}, v{vR}, v{vO+i}")
    for u in range(4):
        for i in range(4): e(f"    v_cvt_pk_bf16_f32 v{vO+8*u+i}, v{vO+8*u+2*i}, v{vO+8*u+2*i+1}")
    for u in range(4): e(f"    buffer_store_dwordx4 {vr(vO+8*u)}, v{vQoff}, {sr(sO)}, s{sQN} offen offset:{64*u}")
    e("    s_waitcnt vmcnt(0)")
    e(f"    s_cmp_lg_u32 s{sFLAG}, 0")
    e("    s_cbranch_scc1 L_fb_blk")
    e("L_end:")
    e("    s_endpgm")
    return "\n".join(o) + "\n"

def simple_kfill():
    o = []; e = o.append
    e(f"    s_mov_b32 s{sKT}, 0")
    e(f"    v_mov_b32 v9, v{vKw0}")
    e("L_kf:")
    e(f"    buffer_load_dwordx4 {vr(vOS)}, v{vQoff}, {sr(sK)}, s{sKT} offen")
    e(f"    buffer_load_dwordx4 {vr(vOS+4)}, v{vQoff}, {sr(sK)}, s{sKT} offen offset:64")
    e("    s_waitcnt vmcnt(0)")
    for i in range(8):
        e(f"    v_lshlrev_b32 v16, 16, v{vOS+i}")
        e(f"    v_and_b32 v17, s{sMASK}, v{vOS+i}")
        e(f"    v_mul_f32 v16, s{sC}, v16")
        e(f"    v_mul_f32 v17, s{sC}, v17")
        e(f"    v_cvt_pk_bf16_f32 v{vOS+i}, v16, v17")
    e(f"    ds_write_b128 v9, {vr(vOS)}")
    e(f"    ds_write_b128 v9, {vr(vOS+4)} offset:1024")
    e(f"    s_waitcnt lgkmcnt(0)")
    e(f"    v_add_u32 v9, 0x2000, v9")
    e(f"    s_add_u32 s{sKT}, s{sKT}, 0x2000")
    e(f"    s_cmp_lt_u32 s{sKT}, 0x20000")
    e("    s_cbranch_scc1 L_kf")
    e(f"    s_mov_b32 s{sFLAG}, 0xffff")
    return "\n".join(o) + "\n"

if __name__ == "__main__":
    a, b = setup()
    s = HEADER.format(name=NAME) + a + b + simple_kfill() + fallback() + FOOTER.format(name=NAME)
    open("k_slow.s", "w").write(s)
```

```python
import struct, math
NAME = "standalone__gqa_softmax__near_ridge_kernel"

def f2u(x): return struct.unpack("<I", struct.pack("<f", x))[0]
CSCALE = f2u(math.log2(math.e) / math.sqrt(128.0))

vQoff, vVsrc, vKr0, vKr1, vVr, vKw0, vKw1 = 1, 2, 3, 4, 5, 6, 7
vR, vT = 12, 14
vTMP = 16
vONE = 24
vLS = 28
vL = 32
vP = 48
vS = 64
vOS = 96
vO = 128
aQ, aK, aV, aQS = 0, 64, 128, 192
sWV = 3
sQ, sK, sV, sO = 8, 12, 16, 20
sC, sMASK, sLO, sRNG, sFLAG = 28, 29, 30, 31, 32
sQN, sON, sVT, sKT, sCNT = 33, 34, 35, 36, 37
sM0B = 48
sSTAMP = 52
sT0 = 40
LDS_V = 131072

HEADER = """; Kernarg layout (48 bytes): q, k, v, out, debug, ws pointers.
; @launch grid=(256,1,1) block=(256,1,1) lds=163840
.amdgcn_target "amdgcn-amd-amdhsa--gfx950"
.text
.globl {name}
.p2align 8
.type {name},@function
{name}:
"""
FOOTER = """
.section .rodata,"a"
.p2align 6
.amdhsa_kernel {name}
  .amdhsa_next_free_vgpr 512
  .amdhsa_next_free_sgpr 102
  .amdhsa_accum_offset 256
  .amdhsa_group_segment_fixed_size 0
  .amdhsa_kernarg_size 48
  .amdhsa_user_sgpr_count 2
  .amdhsa_user_sgpr_kernarg_segment_ptr 1
  .amdhsa_system_sgpr_workgroup_id_x 1
.end_amdhsa_kernel
"""

def vr(b, n=4): return f"v[{b}:{b+n-1}]"
def ar(b, n=4): return f"a[{b}:{b+n-1}]"
def sr(b, n=4): return f"s[{b}:{b+n-1}]"

def setup(lo_exp=-24, hi_exp=32):
    lo = (127 + lo_exp) << 23; hi = (127 + hi_exp) << 23
    return f"""
    s_cmp_ge_u32 s2, 256
    s_cbranch_scc1 L_end
    s_load_dwordx4 s[4:7], s[0:1], 0          ; q, k
    s_load_dwordx4 s[24:27], s[0:1], 16       ; v, out
    v_readfirstlane_b32 s{sWV}, v0
    v_and_b32 v0, 63, v0                      ; lane
    v_and_b32 v8, 15, v0                      ; l&15
    v_lshrrev_b32 v9, 4, v0                   ; l>>4
    s_lshr_b32 s{sWV}, s{sWV}, 6
    s_and_b32 s40, s2, 7
    s_lshl_b32 s40, s40, 3
    s_lshr_b32 s41, s2, 5
    s_add_u32 s40, s40, s41
    s_bfe_u32 s41, s2, 0x20003
    s_lshl_b32 s42, s40, 20
    s_lshl_b32 s41, s41, 18
    s_add_u32 s42, s42, s41
    s_lshl_b32 s41, s{sWV}, 16
    s_add_u32 s42, s42, s41
    s_lshl_b32 s43, s40, 17
    s_lshr_b32 s44, s{sWV}, 1
    s_lshl_b32 s44, s44, 12
    s_and_b32 s45, s{sWV}, 1
    s_lshl_b32 s45, s45, 7
    s_add_u32 s44, s44, s45
    s_lshl_b32 s45, s{sWV}, 11
    v_lshlrev_b32 v{vQoff}, 8, v8
    v_lshl_add_u32 v{vQoff}, v9, 4, v{vQoff}  ; (l&15)*256 + (l>>4)*16
    v_bfe_u32 v10, v0, 2, 2
    v_and_b32 v11, 3, v0
    v_lshlrev_b32 v{vVsrc}, 8, v10
    v_lshl_add_u32 v{vVsrc}, v9, 6, v{vVsrc}
    v_lshl_add_u32 v{vVsrc}, v11, 4, v{vVsrc} ; ((l>>2)&3)*256 + (l>>4)*64 + (l&3)*16
    s_mov_b32 s{sQ+2}, 0x10000
    s_mov_b32 s{sQ+3}, 0x20000
    s_mov_b32 s{sK+3}, 0x20000
    s_mov_b32 s{sV+3}, 0x20000
    s_mov_b32 s{sO+2}, 0x10000
    s_mov_b32 s{sO+3}, 0x20000
    s_sub_u32 s{sK+2}, 0x20000, s44
    s_sub_u32 s{sV+2}, 0x20000, s45
    s_add_u32 s44, s44, s43
    s_add_u32 s46, s45, s43
    s_add_u32 s{sM0B}, s45, {LDS_V}
    s_add_u32 s{sM0B+1}, s45, {LDS_V+8192}
    s_add_u32 s{sM0B+2}, s45, {LDS_V+16384}
    s_add_u32 s{sM0B+3}, s45, {LDS_V+24576}
    s_mov_b32 s{sQN}, 0
    s_mov_b32 s{sON}, 0
    s_waitcnt lgkmcnt(0)
    s_add_u32 s{sK}, s6, s44
    s_addc_u32 s{sK+1}, s7, 0
    s_add_u32 s{sQ}, s4, s42
    s_addc_u32 s{sQ+1}, s5, 0
    s_add_u32 s{sV}, s24, s46
    s_addc_u32 s{sV+1}, s25, 0
    s_add_u32 s{sO}, s26, s42
    s_addc_u32 s{sO+1}, s27, 0
""", f"""
    v_lshlrev_b32 v{vKr0}, 4, v0
    v_add_u32 v{vKr1}, 0x10000, v{vKr0}
    v_add_u32 v{vKw0}, s45, v{vKr0}
    v_add_u32 v{vKw1}, s45, v{vKr1}
    v_lshlrev_b32 v{vVr}, 10, v9
    v_lshl_add_u32 v{vVr}, v8, 4, v{vVr}
    v_add_u32 v{vVr}, {LDS_V}, v{vVr}
    v_mov_b32 v{vONE}, 0x3f803f80
    s_mov_b32 s{sC}, {CSCALE:#x}
    s_mov_b32 s{sMASK}, 0xffff0000
    s_mov_b32 s{sLO}, {lo:#x}
    s_mov_b32 s{sRNG}, {hi-lo:#x}
    s_mov_b32 s{sFLAG}, 0
    v_mov_b32 v{vONE+1}, v{vONE}
    v_mov_b32 v{vONE+2}, v{vONE}
    v_mov_b32 v{vONE+3}, v{vONE}
"""

def mfma(d, a, b, c):
    return f"v_mfma_f32_16x16x32_bf16 {d}, {a}, {b}, {c}"

def fallback():
    o = []
    e = o.append
    vM, vA, vVA = 8, 9, 10
    def qk():
        for f in range(8): e(f"    ds_read_b128 {ar(aK+4*f)}, v{vA} offset:{1024*f}")
        e(f"    v_add_u32 v{vA}, 0x2000, v{vA}")
        e("    s_waitcnt lgkmcnt(0)")
        for k2 in range(2):
            for ks in range(4):
                d = vr(vS+4*k2)
                e("    " + mfma(d, ar(aK+16*k2+4*ks), ar(aQ+4*ks), d if ks else "0"))
        e("    s_nop 9")
    e("L_fb:")
    e("    s_waitcnt vmcnt(0) lgkmcnt(0)")
    e("    s_barrier")
    e(f"    s_cmp_eq_u32 s{sFLAG}, 0")
    e("    s_cbranch_scc1 L_end")
    e(f"    s_lshl_b32 s40, s{sWV}, 11")
    e(f"    s_sub_u32 s{sV}, s{sV}, s40")
    e(f"    s_subb_u32 s{sV+1}, s{sV+1}, 0")
    e(f"    s_mov_b32 s{sV+2}, 0x20000")
    e(f"    s_lshl_b32 s40, s{sWV}, 13")
    e(f"    v_add_u32 v{vVA}, s40, v{vVr}")
    e(f"    s_add_u32 s{sM0B}, s40, {LDS_V}")
    e("L_fb_blk:")
    e(f"    s_ff1_i32_b32 s40, s{sFLAG}")
    e(f"    s_bitset0_b32 s{sFLAG}, s40")
    e(f"    s_sub_u32 s40, 15, s40")
    e(f"    s_lshl_b32 s{sQN}, s40, 12")
    for ks in range(4): e(f"    buffer_load_dwordx4 {ar(aQ+4*ks)}, v{vQoff}, {sr(sQ)}, s{sQN} offen offset:{64*ks}")
    e(f"    v_mov_b32 v{vM}, 0xff800000")
    e(f"    v_mov_b32 v{vA}, v{vKr0}")
    for i in range(32): e(f"    v_mov_b32 v{vO+i}, 0")
    for i in range(4): e(f"    v_mov_b32 v{vL+i}, 0")
    e(f"    s_mov_b32 s{sCNT}, 16")
    e("    s_waitcnt vmcnt(0)")
    e("L_fb_max:")
    qk()
    for i in range(4): e(f"    v_max3_f32 v{vM}, v{vM}, v{vS+2*i}, v{vS+2*i+1}")
    e(f"    s_sub_u32 s{sCNT}, s{sCNT}, 1")
    e(f"    s_cmp_lg_u32 s{sCNT}, 0")
    e("    s_cbranch_scc1 L_fb_max")
    for sw in ("v_permlane32_swap_b32", "v_permlane16_swap_b32"):
        e(f"    v_mov_b32 v{vT}, v{vM}")
        e("    s_nop 1")
        e(f"    {sw} v{vT}, v{vM}")
        e("    s_nop 1")
        e(f"    v_max_f32 v{vM}, v{vM}, v{vT}")
    e(f"    v_mov_b32 v{vA}, v{vKr0}")
    e(f"    s_mov_b32 s{sVT}, 0")
    e("L_fb_pv:")
    for h in range(2):
        e(f"    s_add_u32 m0, s{sM0B}, {4096*h}")
        e("    s_nop 0")
        for b in range(4): e(f"    buffer_load_dwordx4 v{vVsrc}, {sr(sV)}, s{sVT} offen offset:{1024*b} lds")
        e(f"    s_add_u32 s{sVT}, s{sVT}, 4096")
    qk()
    for i in range(8): e(f"    v_sub_f32 v{vS+i}, v{vS+i}, v{vM}")
    for i in range(8): e(f"    v_exp_f32 v{vS+i}, v{vS+i}")
    e("    s_nop 0")
    for i in range(4): e(f"    v_cvt_pk_bf16_f32 v{vP+i}, v{vS+2*i}, v{vS+2*i+1}")
    e("    s_waitcnt vmcnt(0)")
    for dt in range(8):
        for h in range(2):
            e(f"    ds_read_b64_tr_b16 {ar(aV+4*dt+2*h, 2)}, v{vVA} offset:{4096*h + 256*(dt>>1) + 8*(dt&1)}")
    e("    s_waitcnt lgkmcnt(0)")
    e("    " + mfma(vr(vL), vr(vONE), vr(vP), vr(vL)))
    for dt in range(8): e("    " + mfma(vr(vO+4*dt), ar(aV+4*dt), vr(vP), vr(vO+4*dt)))
    e(f"    s_cmp_lt_u32 s{sVT}, 0x20000")
    e("    s_cbranch_scc1 L_fb_pv")
    e("    s_nop 9")
    e(f"    v_rcp_f32 v{vR}, v{vL}")
    e("    s_nop 0")
    for i in range(32): e(f"    v_mul_f32 v{vO+i}, v{vR}, v{vO+i}")
    for u in range(4):
        for i in range(4): e(f"    v_cvt_pk_bf16_f32 v{vO+8*u+i}, v{vO+8*u+2*i}, v{vO+8*u+2*i+1}")
    for u in range(4): e(f"    buffer_store_dwordx4 {vr(vO+8*u)}, v{vQoff}, {sr(sO)}, s{sQN} offen offset:{64*u}")
    e("    s_waitcnt vmcnt(0)")
    e(f"    s_cmp_lg_u32 s{sFLAG}, 0")
    e("    s_cbranch_scc1 L_fb_blk")
    e("L_end:")
    e("    s_endpgm")
    return "\n".join(o) + "\n"

def simple_kfill():
    o = []; e = o.append
    e(f"    s_mov_b32 s{sKT}, 0")
    e(f"    v_mov_b32 v9, v{vKw0}")
    e("L_kf:")
    e(f"    buffer_load_dwordx4 {vr(vOS)}, v{vQoff}, {sr(sK)}, s{sKT} offen")
    e(f"    buffer_load_dwordx4 {vr(vOS+4)}, v{vQoff}, {sr(sK)}, s{sKT} offen offset:64")
    e("    s_waitcnt vmcnt(0)")
    for i in range(8):
        e(f"    v_lshlrev_b32 v16, 16, v{vOS+i}")
        e(f"    v_and_b32 v17, s{sMASK}, v{vOS+i}")
        e(f"    v_mul_f32 v16, s{sC}, v16")
        e(f"    v_mul_f32 v17, s{sC}, v17")
        e(f"    v_cvt_pk_bf16_f32 v{vOS+i}, v16, v17")
    e(f"    ds_write_b128 v9, {vr(vOS)}")
    e(f"    ds_write_b128 v9, {vr(vOS+4)} offset:1024")
    e(f"    s_waitcnt lgkmcnt(0)")
    e(f"    v_add_u32 v9, 0x2000, v9")
    e(f"    s_add_u32 s{sKT}, s{sKT}, 0x2000")
    e(f"    s_cmp_lt_u32 s{sKT}, 0x20000")
    e("    s_cbranch_scc1 L_kf")
    e(f"    s_mov_b32 s{sFLAG}, 0xffff")
    return "\n".join(o) + "\n"

if __name__ == "__main__":
    a, b = setup()
    s = HEADER.format(name=NAME) + a + b + simple_kfill() + fallback() + FOOTER.format(name=NAME)
    open("k_slow.s", "w").write(s)
```

```python
import re, bisect
INF = 10**9

COST = dict(valu=4, trans=8, dsr=4, dsw=12, ld=4, dma=4, st=22, salu=0, bar=0, pk=4, br=0)
VM = ('ld', 'dma', 'st'); LG = ('dsr', 'dsw')
ASYNC_W = ('ld', 'dsr')

def regs(cls, b, n=1): return [f"{cls}{b+i}" for i in range(n)]

class Op:
    n = 0
    def __init__(s, text, kind, rd=(), wr=(), est=-INF, dl=INF, key=None, done=(), after=(), gap=None, size=None):
        s.text, s.kind, s.rd, s.wr = text, kind, list(rd), list(wr)
        s.est, s.dl, s.key = est, dl, key
        s.done = list(done)
        s.after = list(after)
        s.fixed = gap
        s.pred = []; s.succ = []
        s.gap = None; s.idx = None; s.po = None
        s.cost = COST.get(kind, 0)
    def __repr__(s): return f"<{s.text} @{s.gap}>"

class Prog:
    def __init__(s, LM=3, LDS=8):
        s.ops = []; s.nm = 0; s.LM = LM; s.LDS = LDS
        s.cap = {}
        s.ldsfn = None
    def add(s, *a, **k):
        o = Op(*a, **k); o.po = len(s.ops); s.ops.append(o)
        if o.kind == 'mfma': o.idx = s.nm; o.gap = o.idx; s.nm += 1
        return o
    @property
    def cur(s): return s.nm - 1

    def dist(s, p, c, typ):
        pm, cm = p.kind == 'mfma', c.kind == 'mfma'
        if pm and cm: return 0
        if pm: return s.LM if typ != 'WAR' else 0
        if typ == 'done' or (typ in ('RAW', 'WAW') and p.kind in ASYNC_W):
            if p.kind in LG: return 'LDS'
            return 1
        if cm or c.kind in ('bar', 'br'):
            if typ == 'RAW': return 2
            if p.kind in ('st', 'dsw'): return 2
            return 1
        if p.kind in ('bar', 'br'): return 1
        if p.kind == 'salu': return 1 if (typ == 'RAW' and 'm0' in p.wr) or c.kind == 'salu' else 0
        if c.kind == 'salu': return 1
        if typ == 'RAW': return 1
        if p.kind in ('st', 'dsw'): return 1
        if c.kind in VM + LG and p.kind not in VM + LG: return 1
        return 0

    def deps(s):
        lw, rs = {}, {}
        for o in s.ops:
            e = {}
            def edge(p, typ):
                if p is o: return
                d = s.dist(p, o, typ)
                old = e.get(p)
                if old is None or old == 0 or (d == 'LDS') or (old != 'LDS' and d > old): e[p] = d if old != 'LDS' else old
            for r in o.rd:
                if r in lw: edge(lw[r], 'RAW')
            for r in o.wr:
                if r in lw: edge(lw[r], 'WAW')
                for p in rs.get(r, ()): edge(p, 'WAR')
            for p in o.done: edge(p, 'done')
            for p in o.after: edge(p, 'ord')
            for p, d in e.items():
                o.pred.append((p, d)); p.succ.append((o, d))
            for r in o.rd: rs.setdefault(r, []).append(o)
            for r in o.wr: lw[r] = o; rs[r] = []

    def L(s, d, g):
        if d == 'LDS': return s.ldsfn(g) if s.ldsfn else s.LDS
        return d

    def schedule(s, verbose=False):
        last = s.nm - 1
        for o in s.ops:
            if o.fixed is not None: o.est = o.dl = o.fixed
        for o in reversed(s.ops):
            if o.kind == 'mfma': continue
            hard = last; soft = min(o.dl, last)
            for c, d in o.succ:
                if c.kind == 'mfma':
                    hard = min(hard, c.idx - 1); soft = min(soft, c.idx - max(1, s.L(d, c.idx)))
                else:
                    solo = c.kind in ('bar', 'br') and c.hard >= 0
                    hard = min(hard, c.hard - (1 if solo else 0)); soft = min(soft, c.soft - s.L(d, c.soft))
            if o.fixed is not None:
                assert o.fixed <= hard, (o, hard); hard = soft = o.fixed
            while s.cap.get(hard, 8) == 0 and o.kind not in ('bar', 'br'): hard -= 1
            while s.cap.get(soft, 8) == 0 and o.kind not in ('bar', 'br'): soft -= 1
            o.hard = hard; o.soft = max(-1 if o.fixed == -1 else 0, min(soft, hard)) if hard >= 0 else hard
        fill = [o for o in s.ops if o.kind != 'mfma']
        fill.sort(key=lambda o: (o.soft, o.po))
        gaps = {g: [] for g in range(-1, last + 1)}
        pend = fill
        lastbig = False
        H = 40
        for g in range(-1, last + 1):
            here = gaps[g]
            def ready(o, strict=True):
                if strict and o.est > g: return False
                for p, d in o.pred:
                    if p.gap is None or p.gap > g: return False
                    if strict and p.gap + s.L(d, g) > g: return False
                    if p.kind in ('bar', 'br') and p.gap == g and g != -1: return False
                return True
            def place(o): o.gap = g; here.append(o)
            cap = s.cap.get(g, 8)
            changed = True
            while changed:
                changed = False
                for o in pend:
                    if o.soft > g: break
                    if o.gap is not None: continue
                    if cap == 0 and o.kind not in ('bar', 'br'):
                        assert o.hard > g, (o, g); continue
                    if (o.hard <= g and ready(o, False)) or ready(o):
                        place(o); changed = True
            for o in pend:
                if o.soft > g: break
                assert o.gap is not None or o.hard > g, ("cannot place", o, g, o.hard, [(p, d) for p, d in o.pred if p.gap is None or p.gap > g])
            pend = [o for o in pend if o.gap is None]
            if cap and g >= 0:
                used = sum(o.cost for o in here)
                rdy = [o for o in pend[:400] if o.fixed is None and ready(o)]
                if not any(o.kind == 'salu' for o in here):
                    for o in rdy:
                        if o.kind == 'salu': place(o); break
                big = [o for o in rdy if o.cost >= 8]
                small = [o for o in rdy if o.cost == 4]
                def picksmall(room):
                    out = []; nmem = sum(o.kind in VM + LG for o in here)
                    for o in small:
                        if room < 4: break
                        if o.kind in VM + LG:
                            if nmem >= 1: continue
                            nmem += 1
                        out.append(o); room -= 4
                    return out
                room = cap - used
                if room >= 8:
                    a = big[:1] + (picksmall(room - big[0].cost) if big and big[0].kind == 'trans' else []) if big else []
                    b = picksmall(room)
                    def over(ch):
                        cum = 0; worst = 0
                        for o in pend:
                            if o.soft > g + H: break
                            if o in ch or o.gap is not None: continue
                            cum += min(o.cost, 8)
                            worst = max(worst, cum - 8 * (o.soft - g))
                        return worst
                    fa, fb = sum(min(o.cost, 8) for o in a), sum(o.cost for o in b)
                    if not a: ch = b
                    elif not b: ch = a
                    else:
                        oa, ob = over(a), over(b)
                        if oa != ob: ch = a if oa < ob else b
                        elif fa != fb: ch = a if fa > fb else b
                        else: ch = b if lastbig else a
                    for o in ch: place(o)
                elif room >= 4:
                    for o in picksmall(room): place(o)
                pend = [o for o in pend if o.gap is None]
            lastbig = any(o.cost >= 8 for o in here)
        assert not pend, pend[:5]
        s.gaps = gaps

    def order_gap(s, g):
        ops = s.gaps[g]
        if g == -1: return sorted(ops, key=lambda o: o.po)
        cls = lambda o: 0 if o.kind in ('salu', 'bar', 'br') else (1 if o.kind in VM + LG else 2)
        rest = sorted(ops, key=lambda o: (cls(o), o.soft, o.po)); out = []; done = set()
        inset = set(ops)
        while rest:
            cand = [o for o in rest if all(p not in inset or p in done for p, _ in o.pred)]
            pick = cand[0]
            if out:
                for o in cand:
                    if cls(o) == cls(cand[0]) and not (set(o.rd) & set(out[-1].wr)): pick = o; break
            out.append(pick); done.add(pick); rest.remove(pick)
        return out

    def linear(s):
        mf = [o for o in s.ops if o.kind == 'mfma']
        seq = list(s.order_gap(-1))
        for g in range(s.nm):
            seq.append(mf[g]); seq += s.order_gap(g)
        pos = {o: i for i, o in enumerate(seq)}
        for o in seq:
            for p, _ in o.pred: assert pos[p] < pos[o], ("order violated", p, o)
        s.seq = seq
        return seq

def insert_waits(seq, LDS=8, back=3):
    waits = {}
    vmi, lgi = {}, {}
    vm_before, lg_before = [], []
    nv = nl = 0
    for o in seq:
        vm_before.append(nv); lg_before.append(nl)
        if o.kind in VM: vmi[o] = nv; nv += 1
        if o.kind in LG: lgi[o] = nl; nl += 1
    lgops = [o for o in seq if o.kind in LG]
    pos = {o: i for i, o in enumerate(seq)}
    vdone = ldone = 0
    pend = {}
    s1 = []
    for i, o in enumerate(seq):
        need = list(o.done)
        for r in o.rd + o.wr:
            if r in pend: need.append(pend[r])
        nvm = max([vmi[p] + 1 for p in need if p.kind in VM], default=0)
        nlg = max([lgi[p] + 1 for p in need if p.kind in LG], default=0)
        if nvm > vdone or nlg > ldone:
            lastprod = max(pos[p] for p in need if (p.kind in VM and vmi[p] >= vdone) or (p.kind in LG and lgi[p] >= ldone))
            at = None
            cands = [p for p in s1[-back:] if p > lastprod and not (p == i and o.kind in ('bar', 'br'))]
            for p in reversed(cands):
                if seq[p].kind in ('bar', 'br'): continue
                if p in waits or seq[p].kind != 'salu': at = p; break
            if at is None:
                ok = [p for p in cands if seq[p].kind not in ('bar', 'br')]
                at = ok[-1] if ok else i
            if nlg > ldone:
                g = seq[at - 1].gap if at else -1
                while nlg < lg_before[at] and g >= 0 and lgops[nlg].gap + LDS <= g: nlg += 1
            w = waits.setdefault(at, [None, None])
            if nvm > vdone:
                n = min(63, vm_before[at] - nvm); w[0] = n if w[0] is None else min(w[0], n); vdone = vm_before[at] - n
            if nlg > ldone:
                n = min(15, lg_before[at] - nlg); w[1] = n if w[1] is None else min(w[1], n); ldone = lg_before[at] - n
        for r in o.rd + o.wr: pend.pop(r, None)
        if o.kind in ASYNC_W:
            for r in o.wr: pend[r] = o
        if o.kind == 'mfma': s1.append(i + 1)
    return waits

def wait_text(w):
    return "s_waitcnt " + " ".join(x for x in (f"vmcnt({w[0]})" if w[0] is not None else "", f"lgkmcnt({w[1]})" if w[1] is not None else "") if x)

def with_waits(seq, waits):
    out = []
    for i, o in enumerate(seq):
        if i in waits:
            w = Op(wait_text(waits[i]), 'wait'); w.gap = seq[i-1].gap if i else -1; w.w = waits[i]; out.append(w)
        out.append(o)
    return out

VALUK = ('valu', 'trans', 'pk')
def hazards(seq):
    need = {}
    t = 0; tm = -100
    wr = {}
    stw = {}
    mc = {}
    for i, o in enumerate(seq):
        req = t
        k = o.kind
        for r in o.rd + o.wr:
            if r not in wr: continue
            tp, p = wr[r]; isrd = r in o.rd
            n = None
            if p.kind == 'mfma':
                if k == 'mfma':
                    if isrd and r not in getattr(o, 'srcc', ()): n = 8 + 2
                    elif isrd and list(o.srcc) != list(p.wr): n = 6 + 2
                elif k not in ('salu', 'wait', 'bar', 'br'): n = 8 + 2
            elif p.kind in VALUK:
                if k == 'mfma' and isrd: n = 2
                elif p.kind == 'trans' and k in ('valu', 'pk') + VM + LG and isrd: n = 1
                elif r[0] == 's' or r == 'vcc':
                    if k in VM and isrd: n = 5
                    elif k in VALUK and isrd: n = 2
                    elif k == 'salu' and isrd: n = 1
                if 'permlane' in o.text: n = max(n or 0, 2)
                if 'readfirstlane' in o.text and isrd: n = max(n or 0, 1)
            elif p.kind == 'salu':
                if r == 'm0' and k == 'dma': n = 1
            if n is not None: req = max(req, tp + n + 1)
        for r in o.wr:
            if r in stw: req = max(req, stw[r] + 3)
            if r in mc and k in VALUK: req = max(req, mc[r] + 4)
        nat = max(t, tm + 4) if k == 'mfma' else t
        if req > nat:
            need[i] = req - t; t = req
        t = max(t, nat)
        for r in o.wr: wr[r] = (t, o)
        if k in ('st', 'dsw'):
            for r in o.rd: stw[r] = t
        if k == 'mfma':
            tm = t
            for r in getattr(o, 'srcc', ()): mc[r] = t
        m = re.match(r"s_nop (\d+)", o.text)
        t += 1 + (int(m.group(1)) if m else 0)
    return need

def with_nops(seq, need):
    out = []
    for i, o in enumerate(seq):
        if i in need:
            n = need[i]
            while n > 0:
                k = min(n, 16); w = Op(f"s_nop {k-1}", 'nop'); w.gap = seq[i-1].gap if i else -1; w.cost = 4*k; out.append(w); n -= k
        out.append(o)
    return out

def estimate(seq):
    tot = 0; per = {}; g = -1; cur = []
    def flush():
        c = 0; sc = 0; prev = None
        for j, o in enumerate(cur):
            if o.kind in ('salu', 'wait', 'bar', 'br', 'nop'):
                x = o.cost if o.kind == 'nop' else 4
                if j == 0 and g >= 0: x -= 4
                c += x
            else:
                c += o.cost
                if o.kind in VM + LG and prev in VALUK: c += 8
            prev = o.kind
        per[g] = max(16, 8 + c) if g >= 0 else c
    for o in seq:
        if o.kind == 'mfma': flush(); g = o.idx; cur = []
        else: cur.append(o)
    flush()
    return per

def isize(t):
    m = t.split()[0]
    if m.startswith(('v_mfma', 'buffer_', 'ds_', 'global_', 'v_cvt_pk', 'v_pk_', 'v_accvgpr_read', 'v_accvgpr_write', 's_mem', 's_load', 'v_max3', 'v_lshl_add', 'v_bfe', 'v_med3')): return 8
    if re.search(r"0x[0-9a-f]+|[ ,]\d{3,}\b", t) and not m.startswith(('s_waitcnt', 's_nop', 's_cbranch', 's_branch', 's_movk', 's_addk')): return 8
    return 4
```

```python
import sys, argparse
from common import *
from sched import *

class Cfg:
    OFF = (0, 4, 8, 12)
    LAG = 1
    LDS = 8
    KLA = 5
    KPRO = 5
    QLA = 5
    NQS = 2
    WEARLY = 0
    W64 = True
    QFL = ""; OFL = ""; KFL = ""; VFL = ""
    STAMPS = ()
    LOOP = False
    PRO_ORDER = "K0 K1 K2 V0 Q0 V1 K3 V2 K4 V3 Q1"
    lo_exp = -24; hi_exp = 32
    FORCE = 0
    CPF = 0

def build_prog(c):
    OFF, LAG = c.OFF, c.LAG
    T = 64 + max(OFF)
    units = [(t, qt) for t in range(T) for qt in range(4) if OFF[qt] <= t < OFF[qt] + 64]
    NU = len(units)
    first = {}; lastu = {}
    for u, (t, qt) in enumerate(units): first.setdefault(t, u); lastu[t] = u
    qk0, pv0, Bg = {}, {}, {}
    m = 0
    for g in range(NU + LAG):
        if g < NU: qk0[g] = m; m += 8
        v = g - LAG
        if v >= 0: pv0[v] = m; m += 9
        if v == -1: Bg[0] = m - 1
        if v >= 0 and v == lastu[units[v][0]]: Bg[units[v][0] + 1] = m - 1
    NM = m
    sg = lambda t: -1 if t < 0 else (qk0[first[t]] if t < T else NM - 1)
    P = Prog(LM=3, LDS=c.LDS)
    nact = lambda t: lastu[t] - first[t] + 1
    stepof = []
    for t in range(T): stepof += [t] * (sg(t + 1) - sg(t))
    stepof += [T - 1] * 4
    def ldsfn(g):
        t = stepof[max(0, min(g, NM - 1))]
        if t < 14: return {1: 4, 2: 6, 3: 7, 4: 8}[nact(t)] * c.LDS // 8
        return {1: 6}.get(nact(t), 8) * c.LDS // 8
    P.ldsfn = ldsfn
    start = lambda n: OFF[n % 4] + 16 * (n // 4)
    ldK, dmaV, rdV, wrK, bar = {}, {}, {}, {}, {}
    def kstage(j):
        for qt in (1, 2, 3):
            if j // 4 == qt - 1 and OFF[qt] >= 4 * qt - 1: return vO + 32 * qt + 8 * (j % 4)
        return vOS + 8 * (j % 4)
    def pace(i, n, w0, w1, slack=2):
        w1 = max(w0, w1)
        return dict(est=w0 + i * (w1 - w0 + 1) // n, dl=min(w1, w0 + (i + 1) * (w1 - w0 + 1) // n - 1 + slack))
    def emit_ldK(j, **kw):
        b = kstage(j)
        kw2 = dict(kw)
        if 'est' in kw: kw2 = dict(est=kw['est'] - 1, dl=kw['dl'])
        P.add(f"s_mov_b32 s{sKT}, {j*8192:#x}", 'salu', wr=[f"s{sKT}"], key=('sK', j), **kw2)
        ldK[j] = [P.add(f"buffer_load_dwordx4 {vr(b+4*h)}, v{vQoff}, {sr(sK)}, s{sKT} offen offset:{64*h}{c.KFL}", 'ld',
                        rd=[f"s{sKT}"], wr=regs('v', b+4*h, 4), key=('ldK', j, h), **kw) for h in range(2)]
    def emit_W(j, w=None):
        b = kstage(j); ops = []
        a = vKw0 if j < 8 else vKw1
        seq = []
        tmp = lambda i: vTMP + 2 * (i % 4)
        def part(i, ph):
            x = tmp(i)
            if ph == 0: return [(f"v_lshlrev_b32 v{x}, 16, v{b+i}", 'valu', [f"v{b+i}"], [f"v{x}"]),
                                (f"v_and_b32 v{x+1}, s{sMASK}, v{b+i}", 'valu', [f"v{b+i}"], [f"v{x+1}"])]
            if ph == 1: return [(f"v_mul_f32 v{x}, s{sC}, v{x}", 'valu', [f"v{x}"], [f"v{x}"]),
                                (f"v_mul_f32 v{x+1}, s{sC}, v{x+1}", 'valu', [f"v{x+1}"], [f"v{x+1}"])]
            r = [(f"v_cvt_pk_bf16_f32 v{b+i}, v{x}, v{x+1}", 'valu', [f"v{x}", f"v{x+1}"], [f"v{b+i}"])]
            return r
        def wr(i):
            off = (j % 8) * 8192 + 1024 * (i // 4)
            if c.W64 and w is not None:
                if i % 2 == 1: return [(f"ds_write_b64 v{a}, {vr(b+i-1, 2)} offset:{off + 8*((i%4)//2)}", 'dsw', regs('v', b+i-1, 2), [])]
            elif i % 4 == 3: return [(f"ds_write_b128 v{a}, {vr(b+i-3)} offset:{off}", 'dsw', regs('v', b+i-3, 4), [])]
            return []
        for s_ in range(11):
            if s_ < 8: seq += part(s_, 0)
            if 0 <= s_ - 1 < 8: seq += part(s_ - 1, 1)
            if 0 <= s_ - 2 < 8: seq += part(s_ - 2, 2)
            if 0 <= s_ - 3 < 8: seq += wr(s_ - 3)
        wrK[j] = []
        for i, (txt, kind, rd, wr_) in enumerate(seq):
            if w is None: kw = dict(gap=-1)
            else:
                kw = pace(i, len(seq), w[0], w[1], 0); kw['est'] = w[2]
            o = P.add(txt, kind, rd=rd, wr=wr_, key=('W', j, i), **kw)
            if kind == 'dsw':
                wrK[j].append(o)
                if 'b128' in txt: o.cost = 28
    def emit_dma(t, **kw):
        aft = [bar[t - 4]] if t >= 4 else []
        kw2 = dict(kw)
        if 'est' in kw: kw2 = dict(est=kw['est'] - 4, dl=kw['dl'])
        P.add(f"s_mov_b32 m0, s{sM0B + t % 4}", 'salu', wr=['m0'], key=('m0', t), **kw2)
        P.add(f"s_mov_b32 s{sVT}, {(t % 16) * 8192:#x}", 'salu', wr=[f"s{sVT}"], key=('sV', t), **kw2)
        dmaV[t] = [P.add(f"buffer_load_dwordx4 v{vVsrc}, {sr(sV)}, s{sVT} offen offset:{1024*h}{c.VFL} lds", 'dma',
                         rd=['m0', f"s{sVT}"], after=aft, key=('dma', t, h), **kw) for h in range(2)]
    def emit_rdK(t, aft, w=None):
        j = t % 16; a = vKr0 if j < 8 else vKr1
        for f in range(8):
            kw = dict(gap=-1) if w is None else pace(f, 8, *w)
            d = aK + 32 * (t % 2) + 4 * f
            P.add(f"ds_read_b128 {ar(d)}, v{a} offset:{(j % 8) * 8192 + 1024 * f}", 'dsr', wr=regs('a', d, 4), after=aft, key=('rdK', t, f), **kw)
    def emit_rdV(t, aft, w=None):
        rdV[t] = []
        for i in range(16):
            dt, h = i // 2, i % 2
            kw = dict(gap=-1) if w is None else pace(i, 16, *w)
            d = aV + 32 * (t % 2) + 4 * dt + 2 * h
            rdV[t].append(P.add(f"ds_read_b64_tr_b16 {ar(d, 2)}, v{vVr} offset:{(t % 4) * 8192 + 4096 * h + 256 * (dt >> 1) + 8 * (dt & 1)}",
                                'dsr', wr=regs('a', d, 2), after=aft, key=('rdV', t, i), **kw))
    def emit_ldQ(n, **kw):
        d = aQ + 16 * n if n < 4 else aQS + 16 * (n % c.NQS)
        for ks in range(4):
            P.add(f"buffer_load_dwordx4 {ar(d+4*ks)}, v{vQoff}, {sr(sQ)}, s{sQN} offen offset:{64*ks}{c.QFL}", 'ld',
                  rd=[f"s{sQN}"], wr=regs('a', d+4*ks, 4), key=('ldQ', start(n), ks), **kw)
        kw2 = dict(gap=-1) if 'gap' in kw else dict(dl=kw['dl'] + 4)
        P.add(f"s_addk_i32 s{sQN}, 0x1000", 'salu', rd=[f"s{sQN}"], wr=[f"s{sQN}", 'scc'], key=('sQ', start(n)), **kw2)
    def mf(d, dn, a, an, b, bn, cc, key):
        o = P.add(mfma(f"{dn}[{d}:{d+3}]", f"{an}[{a}:{a+3}]", f"{bn}[{b}:{b+3}]", "0" if cc is None else f"{dn}[{cc}:{cc+3}]"), 'mfma',
                  rd=regs(an, a, 4) + regs(bn, b, 4) + ([] if cc is None else regs(dn, cc, 4)), wr=regs(dn, d, 4), key=key)
        o.srcc = [] if cc is None else regs(dn, cc, 4)
        return o
    nstamp = [0]
    def stamp(**kw):
        if not c.STAMPS: return
        r = sSTAMP + 2 * nstamp[0]; nstamp[0] += 1
        assert r + 1 < 102
        P.add(f"s_memrealtime s[{r}:{r+1}]" if c.STAMPS[0] == 'r' else f"s_memtime s[{r}:{r+1}]", 'salu', key=('stamp', nstamp[0]), **kw)

    doneK, doneV, doneQ = set(), set(), set()
    for x in c.PRO_ORDER.split():
        i = int(x[1:])
        if x[0] == 'K': emit_ldK(i, gap=-1); doneK.add(i)
        if x[0] == 'V': emit_dma(i, gap=-1); doneV.add(i)
        if x[0] == 'Q': emit_ldQ(i, gap=-1); doneQ.add(i)
    P.add("@SETUP2", 'salu', gap=-1)
    for j in range(3): emit_W(j)
    pb = P.add("s_barrier", 'bar', gap=-1, done=wrK[0] + wrK[1] + wrK[2] + dmaV[0])
    stamp(gap=-1)
    emit_rdK(0, [pb]); emit_rdK(1, [pb]); emit_rdV(0, [pb])
    nextQ = [max(doneQ) + 1]; nextK = [max(doneK) + 1]
    NB = 16
    def after_barrier(t):
        if t + 1 <= T - 1:
            dn = list(dmaV[t + 1])
            if t + 4 <= T - 1: dn += rdV[t]
            if 3 <= t + 2 <= 15: dn += wrK[t + 2]
            bar[t] = P.add("s_barrier", 'bar', gap=Bg[t], done=dn, key=('bar', t)); P.cap[Bg[t]] = 0
            if t in c.STAMPS: stamp(est=Bg[t] + 1, dl=Bg[t] + 2)
            if t + 4 <= T - 1: emit_dma(t + 4, est=Bg[t] + 1, dl=Bg[t] + 6)
            hasnext = t + 5 <= T - 1
            w1 = (Bg[t + 1] if hasnext else pv0[first[t + 1]] + 4) - ldsfn(Bg[t + 1])
            emit_rdV(t + 1, [bar[t]], (Bg[t] + 1, w1))
            while nextK[0] <= 15 and (nextK[0] <= t + c.KLA or nextK[0] <= t + 3):
                emit_ldK(nextK[0], est=Bg[t] + 3, dl=Bg[t] + 10); nextK[0] += 1
            if t + 3 <= 15:
                emit_W(t + 3, (Bg[t] + 1, Bg[t + 1] - 2, Bg[max(0, t - c.WEARLY)] + 1))
    started = set()
    for g in range(NU + LAG):
        if g < NU:
            t, qt = units[g]; ph = (t - OFF[qt]) % 16; n = 4 * ((t - OFF[qt]) // 16) + qt
            if g == first[t] and t >= 1 and t + 1 <= T - 1:
                w0 = qk0[g] + 0
                aft = []
                if 3 <= t + 1 <= 15: aft = [bar[t - 1]]; w0 = max(w0, Bg[t - 1] + 1)
                emit_rdK(t + 1, aft, (w0, qk0[first[t + 1]] + 2 - ldsfn(qk0[first[t + 1]] - 1)))
            if ph == 0 and n >= 4:
                for i in range(16):
                    s_ = aQS + 16 * (n % c.NQS) + i; d = aQ + 16 * qt + i
                    P.add(f"v_accvgpr_mov_b32 a{d}, a{s_}", 'valu', rd=[f"a{s_}"], wr=[f"a{d}"], key=('cpQ', t, i))
            if ph == 0: started.add(n)
            S = vS + 8 * (g % 4); Pp = vP + 4 * (g % 4)
            for k2 in range(2):
                for i, ks in enumerate(range(4) if k2 == 0 else range(3, -1, -1)):
                    mf(S + 4*k2, 'v', aK + 32*(t % 2) + 16*k2 + 4*ks, 'a', aQ + 16*qt + 4*ks, 'a', S + 4*k2 if i else None, ('qk', t, qt, k2, ks))
            for i in range(8):
                P.add(f"v_exp_f32 v{S+i}, v{S+i}", 'trans', rd=[f"v{S+i}"], wr=[f"v{S+i}"], key=('exp', t, qt, i))
                if i % 2: P.add(f"v_cvt_pk_bf16_f32 v{Pp+i//2}, v{S+i-1}, v{S+i}", 'valu', rd=[f"v{S+i-1}", f"v{S+i}"], wr=[f"v{Pp+i//2}"], key=('cvt', t, qt, i))
            while nextQ[0] < NB and start(nextQ[0]) - c.QLA <= t and (nextQ[0] < 4 + c.NQS or nextQ[0] - c.NQS in started):
                emit_ldQ(nextQ[0], est=qk0[g] + 2, dl=qk0[g] + 24); nextQ[0] += 1
        v = g - LAG
        if v == -1: after_barrier(0)
        if v >= 0:
            t, qt = units[v]; ph = (t - OFF[qt]) % 16; n = 4 * ((t - OFF[qt]) // 16) + qt
            Pp = vP + 4 * (v % 4)
            stage = ph == 15 and n < 12 and (qt == 3 or OFF[qt + 1] > OFF[qt]) and c.STAGE
            Ld = vLS if stage else vL + 4 * qt; Od = vOS if stage else vO + 32 * qt
            mf(Ld, 'v', vONE, 'v', Pp, 'v', vL + 4*qt if ph else None, ('sum', t, qt))
            for dt in range(8):
                mf(Od + 4*dt, 'v', aV + 32*(t % 2) + 4*dt, 'a', Pp, 'v', vO + 32*qt + 4*dt if ph else None, ('pv', t, qt, dt))
            if ph == 15:
                k = lambda *a: ('ep', t) + a
                R = vR + (n % 2)
                P.add(f"v_rcp_f32 v{R}, v{Ld}", 'trans', rd=[f"v{Ld}"], wr=[f"v{R}"], key=k(0), dl=pv0[v] + 14)
                P.add(f"v_subrev_u32 v{vT}, s{sLO}, v{Ld}", 'valu', rd=[f"v{Ld}"], wr=[f"v{vT}"], key=k(1))
                P.add(f"v_cmp_lt_u32 vcc, s{sRNG}, v{vT}", 'valu', rd=[f"v{vT}"], wr=['vcc'], key=k(2))
                P.add("s_cmp_lg_u64 vcc, 0", 'salu', rd=['vcc'], wr=['scc'], key=k(3))
                P.add(f"s_addc_u32 s{sFLAG}, s{sFLAG}, s{sFLAG}", 'salu', rd=['scc', f"s{sFLAG}"], wr=['scc', f"s{sFLAG}"], key=k(4), dl=pv0[v] + 30)
                for u_ in range(4):
                    b = Od + 8 * u_
                    for i in range(8): P.add(f"v_mul_f32 v{b+i}, v{R}, v{b+i}", 'valu', rd=[f"v{R}", f"v{b+i}"], wr=[f"v{b+i}"], key=k(5, u_, i))
                    for i in range(4): P.add(f"v_cvt_pk_bf16_f32 v{b+i}, v{b+2*i}, v{b+2*i+1}", 'valu', rd=[f"v{b+2*i}", f"v{b+2*i+1}"], wr=[f"v{b+i}"], key=k(6, u_, i))
                    P.add(f"buffer_store_dwordx4 {vr(b)}, v{vQoff}, {sr(sO)}, s{sON} offen offset:{64*u_}{c.OFL}", 'st', rd=regs('v', b, 4) + [f"s{sON}"], key=k(7, u_))
                if n < 15: P.add(f"s_add_i32 s{sON}, s{sON}, s{sC4K}", 'salu', rd=[f"s{sON}"], wr=[f"s{sON}", 'scc'], key=k(8))
            if v == lastu[t]: after_barrier(t + 1)
    P.meta = dict(T=T, sg=sg, NM=NM, Bg=Bg, nstamp=nstamp[0], units=units, qk0=qk0, pv0=pv0, first=first)
    return P
sC4K = 38
Cfg.STAGE = True

def stamp_out(n):
    o = []; e = o.append
    r = sSTAMP + 2 * n
    e("    s_waitcnt vmcnt(0)")
    e(f"    s_memrealtime s[{r}:{r+1}]")
    e("    s_load_dwordx2 s[4:5], s[0:1], 40")
    e("    s_waitcnt lgkmcnt(0)")
    e("    s_mov_b32 s6, 0x10000000")
    e("    s_mov_b32 s7, 0x20000")
    e(f"    s_lshl_b32 s40, s2, 2")
    e(f"    s_add_u32 s40, s40, s{sWV}")
    e(f"    s_lshl_b32 s40, s40, 8")
    e(f"    v_mov_b32 v8, 0")
    for i in range(n + 1):
        e(f"    v_mov_b32 v9, s{sSTAMP + 2*i}")
        e(f"    buffer_store_dword v9, v8, s[4:7], s40 offen offset:{4*i}")
    return "\n".join(o) + "\n"

def generate(c, verbose=True):
    P = build_prog(c)
    P.deps(); P.schedule(); seq = P.linear()
    seq = with_waits(seq, insert_waits(seq, c.LDS))
    seq = with_nops(seq, hazards(seq))
    assert not hazards(seq)
    per = estimate(seq)
    M = P.meta
    if verbose:
        tot = sum(per.values())
        row = [sum(per[g] for g in range(M['sg'](t), M['sg'](t + 1) + (1 if t == M['T'] - 1 else 0))) for t in range(M['T'])]
        print("est cycles", tot, "prologue", per[-1], "mfma", 16 * M['NM'], "bytes", sum(isize(o.text) for o in seq), file=sys.stderr)
        print("per step:", row, file=sys.stderr)
        print("nops:", sum(o.kind == 'nop' for o in seq), "waits:", sum(o.kind == 'wait' for o in seq), file=sys.stderr)
    a, b = setup(c.lo_exp, c.hi_exp)
    b += f"    s_movk_i32 s{sC4K}, 0x1000\n"
    ns = M['nstamp']
    if c.STAMPS:
        r = sSTAMP + 2 * ns
        a = f"    s_memrealtime s[{r}:{r+1}]\n" + a
    if c.CPF:
        pf = ["    s_getpc_b64 s[46:47]", "    v_lshlrev_b32 v15, 7, v0"]
        for i in range((c.CPF + 31) // 32):
            pf += [f"    v_min_u32 v15, {c.CPF*1024-128}, v15", "    global_load_dword v14, v15, s[46:47]", "    v_add_u32 v15, 0x8000, v15"]
        a = a.replace("    v_readfirstlane_b32", "\n".join(pf) + "\n    v_readfirstlane_b32", 1)
    body = []
    for o in seq:
        if o.text == "@SETUP2": body.append(b.rstrip("\n"))
        else: body.append("    " + o.text)
    s = HEADER.format(name=NAME) + a + "\n".join(body) + "\n"
    if c.FORCE: s += f"    s_or_b32 s{sFLAG}, s{sFLAG}, {c.FORCE:#x}\n"
    if c.STAMPS: s += stamp_out(ns + 1)
    s += fallback() + FOOTER.format(name=NAME)
    return s

if __name__ == "__main__":
    out = sys.argv[1]
    c = Cfg()
    for kv in sys.argv[2:]:
        k, v = kv.split("=", 1); assert hasattr(c, k), k
        setattr(c, k, eval(v))
    open(out, "w").write(generate(c))
```

```python
import re, bisect
INF = 10**9

COST = dict(valu=4, trans=8, dsr=4, dsw=12, ld=4, dma=4, st=22, salu=0, bar=0, pk=4, br=0)
VM = ('ld', 'dma', 'st'); LG = ('dsr', 'dsw')
ASYNC_W = ('ld', 'dsr')

def regs(cls, b, n=1): return [f"{cls}{b+i}" for i in range(n)]

class Op:
    n = 0
    def __init__(s, text, kind, rd=(), wr=(), est=-INF, dl=INF, key=None, done=(), after=(), gap=None, size=None):
        s.text, s.kind, s.rd, s.wr = text, kind, list(rd), list(wr)
        s.est, s.dl, s.key = est, dl, key
        s.done = list(done)
        s.after = list(after)
        s.fixed = gap
        s.pred = []; s.succ = []
        s.gap = None; s.idx = None; s.po = None
        s.cost = COST.get(kind, 0)
        s.lo = -INF; s.hi = INF
    def __repr__(s): return f"<{s.text} @{s.gap}>"

class Prog:
    def __init__(s, LM=3, LDS=8):
        s.ops = []; s.nm = 0; s.LM = LM; s.LDS = LDS
        s.cap = {}
        s.ldsfn = None
    def add(s, *a, **k):
        o = Op(*a, **k); o.po = len(s.ops); s.ops.append(o)
        if o.kind == 'mfma': o.idx = s.nm; o.gap = o.idx; s.nm += 1
        return o
    @property
    def cur(s): return s.nm - 1

    def dist(s, p, c, typ):
        pm, cm = p.kind == 'mfma', c.kind == 'mfma'
        if pm and cm: return 0
        if pm: return s.LM if typ != 'WAR' else 0
        if typ == 'done' or (typ in ('RAW', 'WAW') and p.kind in ASYNC_W):
            if p.kind in LG: return 'LDS'
            return 1
        if cm or c.kind in ('bar', 'br'):
            if typ == 'RAW': return 2
            if p.kind in ('st', 'dsw'): return 2
            return 1
        if p.kind in ('bar', 'br'): return 1
        if p.kind == 'salu': return 1 if (typ == 'RAW' and 'm0' in p.wr) or c.kind == 'salu' else 0
        if c.kind == 'salu': return 1
        if typ == 'RAW': return 1
        if p.kind in ('st', 'dsw'): return 1
        if c.kind in VM + LG and p.kind not in VM + LG: return 1
        return 0

    def deps(s):
        lw, rs = {}, {}
        for o in s.ops:
            e = {}
            def edge(p, typ):
                if p is o: return
                d = s.dist(p, o, typ)
                old = e.get(p)
                if old is None or old == 0 or (d == 'LDS') or (old != 'LDS' and d > old): e[p] = d if old != 'LDS' else old
            for r in o.rd:
                if r in lw: edge(lw[r], 'RAW')
            for r in o.wr:
                if r in lw: edge(lw[r], 'WAW')
                for p in rs.get(r, ()): edge(p, 'WAR')
            for p in o.done: edge(p, 'done')
            for p in o.after: edge(p, 'ord')
            for p, d in e.items():
                o.pred.append((p, d)); p.succ.append((o, d))
            for r in o.rd: rs.setdefault(r, []).append(o)
            for r in o.wr: lw[r] = o; rs[r] = []

    def L(s, d, g):
        if d == 'LDS': return s.ldsfn(g) if s.ldsfn else s.LDS
        return d

    def schedule(s, verbose=False):
        last = s.nm - 1
        for o in s.ops:
            if o.fixed is not None: o.est = o.dl = o.fixed
        for o in reversed(s.ops):
            if o.kind == 'mfma': continue
            hard = min(last, o.hi); soft = min(o.dl, last)
            for c, d in o.succ:
                if c.kind == 'mfma':
                    hard = min(hard, c.idx - 1); soft = min(soft, c.idx - max(1, s.L(d, c.idx)))
                else:
                    solo = c.kind in ('bar', 'br') and c.hard >= 0
                    hard = min(hard, c.hard - (1 if solo else 0)); soft = min(soft, c.soft - s.L(d, c.soft))
            if o.fixed is not None:
                assert o.fixed <= hard, (o, hard); hard = soft = o.fixed
            while s.cap.get(hard, 8) == 0 and o.kind not in ('bar', 'br'): hard -= 1
            while s.cap.get(soft, 8) == 0 and o.kind not in ('bar', 'br'): soft -= 1
            o.hard = hard; o.soft = max(-1 if o.fixed == -1 else 0, min(soft, hard)) if hard >= 0 else hard
        fill = [o for o in s.ops if o.kind != 'mfma']
        fill.sort(key=lambda o: (o.soft, o.po))
        gaps = {g: [] for g in range(-1, last + 1)}
        pend = fill
        lastbig = False
        H = 40
        for g in range(-1, last + 1):
            here = gaps[g]
            def ready(o, strict=True):
                if (strict and o.est > g) or o.lo > g: return False
                for p, d in o.pred:
                    if p.gap is None or p.gap > g: return False
                    if strict and p.gap + s.L(d, g) > g: return False
                    if p.kind in ('bar', 'br') and p.gap == g and g != -1: return False
                return True
            def place(o): o.gap = g; here.append(o)
            cap = s.cap.get(g, 8)
            changed = True
            while changed:
                changed = False
                for o in pend:
                    if o.soft > g: break
                    if o.gap is not None: continue
                    if cap == 0 and o.kind not in ('bar', 'br'):
                        assert o.hard > g, (o, g); continue
                    if (o.hard <= g and ready(o, False)) or ready(o):
                        place(o); changed = True
            for o in pend:
                if o.soft > g: break
                assert o.gap is not None or o.hard > g, ("cannot place", o, g, o.hard, [(p, d) for p, d in o.pred if p.gap is None or p.gap > g])
            pend = [o for o in pend if o.gap is None]
            if cap and g >= 0:
                used = sum(o.cost for o in here)
                rdy = [o for o in pend[:400] if o.fixed is None and ready(o)]
                if not any(o.kind == 'salu' for o in here):
                    for o in rdy:
                        if o.kind == 'salu': place(o); break
                big = [o for o in rdy if o.cost >= 8]
                small = [o for o in rdy if o.cost == 4]
                def picksmall(room):
                    out = []; nmem = sum(o.kind in VM + LG for o in here)
                    for o in small:
                        if room < 4: break
                        if o.kind in VM + LG:
                            if nmem >= 1: continue
                            nmem += 1
                        out.append(o); room -= 4
                    return out
                room = cap - used
                if room >= 8:
                    a = big[:1] + (picksmall(room - big[0].cost) if big and big[0].kind == 'trans' else []) if big else []
                    b = picksmall(room)
                    def over(ch):
                        cum = 0; worst = 0
                        for o in pend:
                            if o.soft > g + H: break
                            if o in ch or o.gap is not None: continue
                            cum += min(o.cost, 8)
                            worst = max(worst, cum - 8 * (o.soft - g))
                        return worst
                    fa, fb = sum(min(o.cost, 8) for o in a), sum(o.cost for o in b)
                    if not a: ch = b
                    elif not b: ch = a
                    else:
                        oa, ob = over(a), over(b)
                        if oa != ob: ch = a if oa < ob else b
                        elif fa != fb: ch = a if fa > fb else b
                        else: ch = b if lastbig else a
                    for o in ch: place(o)
                elif room >= 4:
                    for o in picksmall(room): place(o)
                pend = [o for o in pend if o.gap is None]
            lastbig = any(o.cost >= 8 for o in here)
        assert not pend, pend[:5]
        s.gaps = gaps

    def order_gap(s, g):
        ops = s.gaps[g]
        if g == -1: return sorted(ops, key=lambda o: o.po)
        cls = lambda o: 0 if o.kind in ('salu', 'bar', 'br') else (1 if o.kind in VM + LG else 2)
        rest = sorted(ops, key=lambda o: (cls(o), o.soft, o.po)); out = []; done = set()
        inset = set(ops)
        while rest:
            cand = [o for o in rest if all(p not in inset or p in done for p, _ in o.pred)]
            pick = cand[0]
            if out:
                for o in cand:
                    if cls(o) == cls(cand[0]) and not (set(o.rd) & set(out[-1].wr)): pick = o; break
            out.append(pick); done.add(pick); rest.remove(pick)
        return out

    def linear(s):
        mf = [o for o in s.ops if o.kind == 'mfma']
        seq = list(s.order_gap(-1))
        for g in range(s.nm):
            seq.append(mf[g]); seq += s.order_gap(g)
        pos = {o: i for i, o in enumerate(seq)}
        for o in seq:
            for p, _ in o.pred: assert pos[p] < pos[o], ("order violated", p, o)
        s.seq = seq
        return seq

def insert_waits(seq, LDS=8, back=3):
    waits = {}
    vmi, lgi = {}, {}
    vm_before, lg_before = [], []
    nv = nl = 0
    for o in seq:
        vm_before.append(nv); lg_before.append(nl)
        if o.kind in VM: vmi[o] = nv; nv += 1
        if o.kind in LG: lgi[o] = nl; nl += 1
    lgops = [o for o in seq if o.kind in LG]
    pos = {o: i for i, o in enumerate(seq)}
    vdone = ldone = 0
    pend = {}
    s1 = []
    for i, o in enumerate(seq):
        need = list(o.done)
        for r in o.rd + o.wr:
            if r in pend: need.append(pend[r])
        nvm = max([vmi[p] + 1 for p in need if p.kind in VM], default=0)
        nlg = max([lgi[p] + 1 for p in need if p.kind in LG], default=0)
        if nvm > vdone or nlg > ldone:
            lastprod = max(pos[p] for p in need if (p.kind in VM and vmi[p] >= vdone) or (p.kind in LG and lgi[p] >= ldone))
            at = None
            cands = [p for p in s1[-back:] if p > lastprod and not (p == i and o.kind in ('bar', 'br'))]
            for p in reversed(cands):
                if seq[p].kind in ('bar', 'br'): continue
                if p in waits or seq[p].kind != 'salu': at = p; break
            if at is None:
                ok = [p for p in cands if seq[p].kind not in ('bar', 'br')]
                at = ok[-1] if ok else i
            if nlg > ldone:
                g = seq[at - 1].gap if at else -1
                while nlg < lg_before[at] and g >= 0 and lgops[nlg].gap + LDS <= g: nlg += 1
            w = waits.setdefault(at, [None, None])
            if nvm > vdone:
                n = min(63, vm_before[at] - nvm); w[0] = n if w[0] is None else min(w[0], n); vdone = vm_before[at] - n
            if nlg > ldone:
                n = min(15, lg_before[at] - nlg); w[1] = n if w[1] is None else min(w[1], n); ldone = lg_before[at] - n
        for r in o.rd + o.wr: pend.pop(r, None)
        if o.kind in ASYNC_W:
            for r in o.wr: pend[r] = o
        if o.kind == 'mfma': s1.append(i + 1)
    return waits

def wait_text(w):
    return "s_waitcnt " + " ".join(x for x in (f"vmcnt({w[0]})" if w[0] is not None else "", f"lgkmcnt({w[1]})" if w[1] is not None else "") if x)

def with_waits(seq, waits):
    out = []
    for i, o in enumerate(seq):
        if i in waits:
            w = Op(wait_text(waits[i]), 'wait'); w.gap = seq[i-1].gap if i else -1; w.w = waits[i]; out.append(w)
        out.append(o)
    return out

def check_waits(seq):
    vm, lg = [], []; vdone = ldone = 0; pend = {}; idx = {}
    for o in seq:
        if o.kind == 'wait':
            if o.w[0] is not None: vdone = max(vdone, len(vm) - o.w[0])
            if o.w[1] is not None: ldone = max(ldone, len(lg) - o.w[1])
            continue
        for p in list(o.done) + [pend[r] for r in o.rd + o.wr if r in pend]:
            assert idx[p] < (vdone if p.kind in VM else ldone), ("uncovered", p, o)
        if o.kind in VM: idx[o] = len(vm); vm.append(o)
        if o.kind in LG: idx[o] = len(lg); lg.append(o)
        if o.kind in ASYNC_W:
            for r in o.wr: pend[r] = o

VALUK = ('valu', 'trans', 'pk')
def hazards(seq):
    need = {}
    t = 0; tm = -100
    wr = {}
    stw = {}
    mc = {}
    for i, o in enumerate(seq):
        req = t
        k = o.kind
        for r in o.rd + o.wr:
            if r not in wr: continue
            tp, p = wr[r]; isrd = r in o.rd
            n = None
            if p.kind == 'mfma':
                if k == 'mfma':
                    if isrd and r not in getattr(o, 'srcc', ()): n = 8 + 2
                    elif isrd and list(o.srcc) != list(p.wr): n = 6 + 2
                elif k not in ('salu', 'wait', 'bar', 'br'): n = 8 + 2
            elif p.kind in VALUK:
                if k == 'mfma' and isrd: n = 2
                elif p.kind == 'trans' and k in ('valu', 'pk') + VM + LG and isrd: n = 1
                elif r[0] == 's' or r == 'vcc':
                    if k in VM and isrd: n = 5
                    elif k in VALUK and isrd: n = 2
                    elif k == 'salu' and isrd: n = 1
                if 'permlane' in o.text: n = max(n or 0, 2)
                if 'readfirstlane' in o.text and isrd: n = max(n or 0, 1)
            elif p.kind == 'salu':
                if r == 'm0' and k == 'dma': n = 1
            if n is not None: req = max(req, tp + n + 1)
        for r in o.wr:
            if r in stw: req = max(req, stw[r] + 3)
            if r in mc and k in VALUK: req = max(req, mc[r] + 4)
        nat = max(t, tm + 4) if k == 'mfma' else t
        if req > nat:
            need[i] = req - t; t = req
        t = max(t, nat)
        for r in o.wr: wr[r] = (t, o)
        if k in ('st', 'dsw'):
            for r in o.rd: stw[r] = t
        if k == 'mfma':
            tm = t
            for r in getattr(o, 'srcc', ()): mc[r] = t
        m = re.match(r"s_nop (\d+)", o.text)
        t += (0 if o.text[0] == '@' else 1) + (int(m.group(1)) if m else 0)
    return need

def with_nops(seq, need):
    out = []
    for i, o in enumerate(seq):
        if i in need:
            n = need[i]
            while n > 0:
                k = min(n, 16); w = Op(f"s_nop {k-1}", 'nop'); w.gap = seq[i-1].gap if i else -1; w.cost = 4*k; out.append(w); n -= k
        out.append(o)
    return out

def estimate(seq):
    tot = 0; per = {}; g = -1; cur = []
    def flush():
        c = 0; sc = 0; prev = None
        for j, o in enumerate(cur):
            if o.kind in ('salu', 'wait', 'bar', 'br', 'nop'):
                x = o.cost if o.kind == 'nop' else 4
                if j == 0 and g >= 0: x -= 4
                c += x
            else:
                c += o.cost
                if o.kind in VM + LG and prev in VALUK: c += 8
            prev = o.kind
        per[g] = max(16, 8 + c) if g >= 0 else c
    for o in seq:
        if o.kind == 'mfma': flush(); g = o.idx; cur = []
        else: cur.append(o)
    flush()
    return per

def isize(t):
    m = t.split()[0]
    if m.startswith(('v_mfma', 'buffer_', 'ds_', 'global_', 'v_cvt_pk', 'v_pk_', 'v_accvgpr_read', 'v_accvgpr_write', 's_mem', 's_load', 'v_max3', 'v_lshl_add', 'v_bfe', 'v_med3')): return 8
    if re.search(r"0x[0-9a-f]+|[ ,]\d{3,}\b", t) and not m.startswith(('s_waitcnt', 's_nop', 's_cbranch', 's_branch', 's_movk', 's_addk')): return 8
    return 4
```

```python
import sys, argparse
from common import *
from sched import *

class Cfg:
    OFF = (0, 4, 8, 12)
    LAG = 1
    LDS = 8
    KLA = 5
    KPRO = 5
    QLA = 5
    NQS = 2
    WEARLY = 0
    W64 = True
    QFL = ""; OFL = ""; KFL = ""; VFL = ""
    STAMPS = ()
    LOOP = False
    PRO_ORDER = "K0 K1 K2 V0 Q0 V1 K3 V2 K4 V3 Q1"
    lo_exp = -24; hi_exp = 32
    FORCE = 0
    CPF = 0

def build_prog(c, seg=None, pin=None):
    OFF, LAG = c.OFF, c.LAG
    T = 64 + max(OFF)
    units = [(t, qt) for t in range(T) for qt in range(4) if OFF[qt] <= t < OFF[qt] + 64]
    NU = len(units)
    first = {}; lastu = {}
    for u, (t, qt) in enumerate(units): first.setdefault(t, u); lastu[t] = u
    qk0, pv0, Bg = {}, {}, {}
    m = 0
    for g in range(NU + LAG):
        if g < NU: qk0[g] = m; m += 8
        v = g - LAG
        if v >= 0: pv0[v] = m; m += 9
        if v == -1: Bg[0] = m - 1
        if v >= 0 and v == lastu[units[v][0]]: Bg[units[v][0] + 1] = m - 1
    NM = m
    sg = lambda t: -1 if t < 0 else (qk0[first[t]] if t < T else NM - 1)
    P = Prog(LM=3, LDS=c.LDS)
    nact = lambda t: lastu[t] - first[t] + 1
    stepof = []
    for t in range(T): stepof += [t] * (sg(t + 1) - sg(t))
    stepof += [T - 1] * 4
    def ldsfn(g):
        t = stepof[max(0, min(g, NM - 1))]
        if t < 14: return {1: 4, 2: 6, 3: 7, 4: 8}[nact(t)] * c.LDS // 8
        return {1: 6}.get(nact(t), 8) * c.LDS // 8
    P.ldsfn = ldsfn
    start = lambda n: OFF[n % 4] + 16 * (n // 4)
    ldK, dmaV, rdV, wrK, bar = {}, {}, {}, {}, {}
    def kstage(j):
        for qt in (1, 2, 3):
            if j // 4 == qt - 1 and OFF[qt] >= 4 * qt - 1: return vO + 32 * qt + 8 * (j % 4)
        return vOS + 8 * (j % 4)
    def pace(i, n, w0, w1, slack=2):
        w1 = max(w0, w1)
        return dict(est=w0 + i * (w1 - w0 + 1) // n, dl=min(w1, w0 + (i + 1) * (w1 - w0 + 1) // n - 1 + slack))
    def emit_ldK(j, **kw):
        b = kstage(j)
        kw2 = dict(kw)
        if 'est' in kw: kw2 = dict(est=kw['est'] - 1, dl=kw['dl'])
        P.add(f"s_mov_b32 s{sKT}, {j*8192:#x}", 'salu', wr=[f"s{sKT}"], key=('sK', j), **kw2)
        ldK[j] = [P.add(f"buffer_load_dwordx4 {vr(b+4*h)}, v{vQoff}, {sr(sK)}, s{sKT} offen offset:{64*h}{c.KFL}", 'ld',
                        rd=[f"s{sKT}"], wr=regs('v', b+4*h, 4), key=('ldK', j, h), **kw) for h in range(2)]
    def emit_W(j, w=None):
        b = kstage(j); ops = []
        a = vKw0 if j < 8 else vKw1
        seq = []
        tmp = lambda i: vTMP + 2 * (i % 4)
        def part(i, ph):
            x = tmp(i)
            if ph == 0: return [(f"v_lshlrev_b32 v{x}, 16, v{b+i}", 'valu', [f"v{b+i}"], [f"v{x}"]),
                                (f"v_and_b32 v{x+1}, s{sMASK}, v{b+i}", 'valu', [f"v{b+i}"], [f"v{x+1}"])]
            if ph == 1: return [(f"v_mul_f32 v{x}, s{sC}, v{x}", 'valu', [f"v{x}"], [f"v{x}"]),
                                (f"v_mul_f32 v{x+1}, s{sC}, v{x+1}", 'valu', [f"v{x+1}"], [f"v{x+1}"])]
            r = [(f"v_cvt_pk_bf16_f32 v{b+i}, v{x}, v{x+1}", 'valu', [f"v{x}", f"v{x+1}"], [f"v{b+i}"])]
            return r
        def wr(i):
            off = (j % 8) * 8192 + 1024 * (i // 4)
            if c.W64 and w is not None:
                if i % 2 == 1: return [(f"ds_write_b64 v{a}, {vr(b+i-1, 2)} offset:{off + 8*((i%4)//2)}", 'dsw', regs('v', b+i-1, 2), [])]
            elif i % 4 == 3: return [(f"ds_write_b128 v{a}, {vr(b+i-3)} offset:{off}", 'dsw', regs('v', b+i-3, 4), [])]
            return []
        for s_ in range(11):
            if s_ < 8: seq += part(s_, 0)
            if 0 <= s_ - 1 < 8: seq += part(s_ - 1, 1)
            if 0 <= s_ - 2 < 8: seq += part(s_ - 2, 2)
            if 0 <= s_ - 3 < 8: seq += wr(s_ - 3)
        wrK[j] = []
        for i, (txt, kind, rd, wr_) in enumerate(seq):
            if w is None: kw = dict(gap=-1)
            else:
                kw = pace(i, len(seq), w[0], w[1], 0); kw['est'] = w[2]
            o = P.add(txt, kind, rd=rd, wr=wr_, key=('W', j, i), **kw)
            if kind == 'dsw':
                wrK[j].append(o)
                if 'b128' in txt: o.cost = 28
    def emit_dma(t, **kw):
        aft = [bar[t - 4]] if t >= 4 else []
        kw2 = dict(kw)
        if 'est' in kw: kw2 = dict(est=kw['est'] - 4, dl=kw['dl'])
        P.add(f"s_mov_b32 m0, s{sM0B + t % 4}", 'salu', wr=['m0'], key=('m0', t), **kw2)
        P.add(f"s_mov_b32 s{sVT}, {(t % 16) * 8192:#x}", 'salu', wr=[f"s{sVT}"], key=('sV', t), **kw2)
        dmaV[t] = [P.add(f"buffer_load_dwordx4 v{vVsrc}, {sr(sV)}, s{sVT} offen offset:{1024*h}{c.VFL} lds", 'dma',
                         rd=['m0', f"s{sVT}"], after=aft, key=('dma', t, h), **kw) for h in range(2)]
    def emit_rdK(t, aft, w=None):
        j = t % 16; a = vKr0 if j < 8 else vKr1
        for f in range(8):
            kw = dict(gap=-1) if w is None else pace(f, 8, *w)
            d = aK + 32 * (t % 2) + 4 * f
            P.add(f"ds_read_b128 {ar(d)}, v{a} offset:{(j % 8) * 8192 + 1024 * f}", 'dsr', wr=regs('a', d, 4), after=aft, key=('rdK', t, f), **kw)
    def emit_rdV(t, aft, w=None):
        rdV[t] = []
        for i in range(16):
            dt, h = i // 2, i % 2
            kw = dict(gap=-1) if w is None else pace(i, 16, *w)
            d = aV + 32 * (t % 2) + 4 * dt + 2 * h
            rdV[t].append(P.add(f"ds_read_b64_tr_b16 {ar(d, 2)}, v{vVr} offset:{(t % 4) * 8192 + 4096 * h + 256 * (dt >> 1) + 8 * (dt & 1)}",
                                'dsr', wr=regs('a', d, 2), after=aft, key=('rdV', t, i), **kw))
    def emit_ldQ(n, **kw):
        d = aQ + 16 * n if n < 4 else aQS + 16 * (n % c.NQS)
        for ks in range(4):
            P.add(f"buffer_load_dwordx4 {ar(d+4*ks)}, v{vQoff}, {sr(sQ)}, s{sQN} offen offset:{64*ks}{c.QFL}", 'ld',
                  rd=[f"s{sQN}"], wr=regs('a', d+4*ks, 4), key=('ldQ', start(n), ks), **kw)
        kw2 = dict(gap=-1) if 'gap' in kw else dict(dl=kw['dl'] + 4)
        P.add(f"s_addk_i32 s{sQN}, 0x1000", 'salu', rd=[f"s{sQN}"], wr=[f"s{sQN}", 'scc'], key=('sQ', start(n)), **kw2)
    def mf(d, dn, a, an, b, bn, cc, key):
        o = P.add(mfma(f"{dn}[{d}:{d+3}]", f"{an}[{a}:{a+3}]", f"{bn}[{b}:{b+3}]", "0" if cc is None else f"{dn}[{cc}:{cc+3}]"), 'mfma',
                  rd=regs(an, a, 4) + regs(bn, b, 4) + ([] if cc is None else regs(dn, cc, 4)), wr=regs(dn, d, 4), key=key)
        o.srcc = [] if cc is None else regs(dn, cc, 4)
        return o
    nstamp = [0]
    def stamp(**kw):
        if not c.STAMPS: return
        r = sSTAMP + 2 * nstamp[0]; nstamp[0] += 1
        assert r + 1 < 102
        P.add(f"s_memrealtime s[{r}:{r+1}]" if c.STAMPS[0] == 'r' else f"s_memtime s[{r}:{r+1}]", 'salu', key=('stamp', nstamp[0]), **kw)

    doneK, doneV, doneQ = set(), set(), set()
    for x in c.PRO_ORDER.split():
        i = int(x[1:])
        if x[0] == 'K': emit_ldK(i, gap=-1); doneK.add(i)
        if x[0] == 'V': emit_dma(i, gap=-1); doneV.add(i)
        if x[0] == 'Q': emit_ldQ(i, gap=-1); doneQ.add(i)
    P.add("@SETUP2", 'salu', gap=-1)
    for j in range(3): emit_W(j)
    pb = P.add("s_barrier", 'bar', gap=-1, done=wrK[0] + wrK[1] + wrK[2] + dmaV[0])
    stamp(gap=-1)
    emit_rdK(0, [pb]); emit_rdK(1, [pb]); emit_rdV(0, [pb])
    nextQ = [max(doneQ) + 1]; nextK = [max(doneK) + 1]
    NB = 16
    cuts = []
    if c.LOOP:
        u0 = units.index((15, 0)); cuts = [pv0[u0] - 1 + 1088 * k for k in range(4)]
        NB = 20
    def after_barrier(t):
        if t + 1 <= T - 1:
            dn = list(dmaV[t + 1])
            if t + 4 <= T - 1: dn += rdV[t]
            if 3 <= t + 2 <= 15: dn += wrK[t + 2]
            bar[t] = P.add("s_barrier", 'bar', gap=Bg[t], done=dn, key=('bar', t)); P.cap[Bg[t]] = 0
            if t in c.STAMPS: stamp(est=Bg[t] + 1, dl=Bg[t] + 2)
            if t + 4 <= T - 1: emit_dma(t + 4, est=Bg[t] + 1, dl=Bg[t] + 6)
            hasnext = t + 5 <= T - 1
            w1 = (Bg[t + 1] if hasnext else pv0[first[t + 1]] + 4) - ldsfn(Bg[t + 1])
            emit_rdV(t + 1, [bar[t]], (Bg[t] + 1, w1))
            while nextK[0] <= 15 and (nextK[0] <= t + c.KLA or nextK[0] <= t + 3):
                emit_ldK(nextK[0], est=Bg[t] + 3, dl=Bg[t] + 10); nextK[0] += 1
            if t + 3 <= 15:
                emit_W(t + 3, (Bg[t] + 1, Bg[t + 1] - 2, Bg[max(0, t - c.WEARLY)] + 1))
    started = set()
    for g in range(NU + LAG):
        if g < NU:
            t, qt = units[g]; ph = (t - OFF[qt]) % 16; n = 4 * ((t - OFF[qt]) // 16) + qt
            if g == first[t] and t >= 1 and t + 1 <= T - 1:
                w0 = qk0[g] + 0
                aft = []
                if 3 <= t + 1 <= 15: aft = [bar[t - 1]]; w0 = max(w0, Bg[t - 1] + 1)
                emit_rdK(t + 1, aft, (w0, qk0[first[t + 1]] + 2 - ldsfn(qk0[first[t + 1]] - 1)))
            if ph == 0 and n >= 4:
                for i in range(16):
                    s_ = aQS + 16 * (n % c.NQS) + i; d = aQ + 16 * qt + i
                    kw = dict(est=cuts[n // 4 - 1] + 1) if c.LOOP and qt == 0 else {}
                    P.add(f"v_accvgpr_mov_b32 a{d}, a{s_}", 'valu', rd=[f"a{s_}"], wr=[f"a{d}"], key=('cpQ', t, i), **kw)
            if ph == 0: started.add(n)
            S = vS + 8 * (g % 4); Pp = vP + 4 * (g % 4)
            for k2 in range(2):
                for i, ks in enumerate(range(4) if k2 == 0 else range(3, -1, -1)):
                    mf(S + 4*k2, 'v', aK + 32*(t % 2) + 16*k2 + 4*ks, 'a', aQ + 16*qt + 4*ks, 'a', S + 4*k2 if i else None, ('qk', t, qt, k2, ks))
            for i in range(8):
                P.add(f"v_exp_f32 v{S+i}, v{S+i}", 'trans', rd=[f"v{S+i}"], wr=[f"v{S+i}"], key=('exp', t, qt, i))
                if i % 2: P.add(f"v_cvt_pk_bf16_f32 v{Pp+i//2}, v{S+i-1}, v{S+i}", 'valu', rd=[f"v{S+i-1}", f"v{S+i}"], wr=[f"v{Pp+i//2}"], key=('cvt', t, qt, i))
            while nextQ[0] < NB and (nextQ[0] < 16 or qk0[g] < cuts[3]) and start(nextQ[0]) - c.QLA <= t and (nextQ[0] < 4 + c.NQS or nextQ[0] - c.NQS in started):
                emit_ldQ(nextQ[0], est=qk0[g] + 2, dl=qk0[g] + 24); nextQ[0] += 1
        v = g - LAG
        if v == -1: after_barrier(0)
        if v >= 0:
            t, qt = units[v]; ph = (t - OFF[qt]) % 16; n = 4 * ((t - OFF[qt]) // 16) + qt
            Pp = vP + 4 * (v % 4)
            if pv0[v] - 1 in cuts:
                k_ = cuts.index(pv0[v] - 1); P.cap[cuts[k_]] = 0
                if k_: P.add(f"s_cmpk_lg_u32 s{sON}, 0xc000", 'salu', rd=[f"s{sON}"], wr=['scc'], key=('cmp', t), est=cuts[k_] - 6)
                P.add("s_cbranch_scc1 L_loop" if k_ else "@LOOP", 'br', rd=['scc'], gap=cuts[k_], key=('br', t))
            stage = ph == 15 and n < 12 and (qt == 3 or OFF[qt + 1] > OFF[qt]) and c.STAGE
            Ld = vLS if stage else vL + 4 * qt; Od = vOS if stage else vO + 32 * qt
            mf(Ld, 'v', vONE, 'v', Pp, 'v', vL + 4*qt if ph else None, ('sum', t, qt))
            for dt in range(8):
                mf(Od + 4*dt, 'v', aV + 32*(t % 2) + 4*dt, 'a', Pp, 'v', vO + 32*qt + 4*dt if ph else None, ('pv', t, qt, dt))
            if ph == 15:
                k = lambda *a: ('ep', t) + a
                R = vR + (n % 2)
                P.add(f"v_rcp_f32 v{R}, v{Ld}", 'trans', rd=[f"v{Ld}"], wr=[f"v{R}"], key=k(0), dl=pv0[v] + 14)
                P.add(f"v_subrev_u32 v{vT}, s{sLO}, v{Ld}", 'valu', rd=[f"v{Ld}"], wr=[f"v{vT}"], key=k(1))
                P.add(f"v_cmp_lt_u32 vcc, s{sRNG}, v{vT}", 'valu', rd=[f"v{vT}"], wr=['vcc'], key=k(2))
                P.add("s_cmp_lg_u64 vcc, 0", 'salu', rd=['vcc'], wr=['scc'], key=k(3))
                P.add(f"s_addc_u32 s{sFLAG}, s{sFLAG}, s{sFLAG}", 'salu', rd=['scc', f"s{sFLAG}"], wr=['scc', f"s{sFLAG}"], key=k(4), dl=pv0[v] + 30)
                for u_ in range(4):
                    b = Od + 8 * u_
                    for i in range(8): P.add(f"v_mul_f32 v{b+i}, v{R}, v{b+i}", 'valu', rd=[f"v{R}", f"v{b+i}"], wr=[f"v{b+i}"], key=k(5, u_, i))
                    for i in range(4): P.add(f"v_cvt_pk_bf16_f32 v{b+i}, v{b+2*i}, v{b+2*i+1}", 'valu', rd=[f"v{b+2*i}", f"v{b+2*i+1}"], wr=[f"v{b+i}"], key=k(6, u_, i))
                    P.add(f"buffer_store_dwordx4 {vr(b)}, v{vQoff}, {sr(sO)}, s{sON} offen offset:{64*u_}{c.OFL}", 'st', rd=regs('v', b, 4) + [f"s{sON}"], key=k(7, u_))
                if n < 15: P.add(f"s_add_i32 s{sON}, s{sON}, s{sC4K}", 'salu', rd=[f"s{sON}"], wr=[f"s{sON}", 'scc'], key=k(8))
            if v == lastu[t]: after_barrier(t + 1)
    if seg:
        keep = []
        for o in P.ops:
            if o.kind in ('mfma', 'bar', 'br') or o.key is None or o.fixed is not None: keep.append(o); continue
            k_ = seg(o)
            if o.key[0] in ('ldQ', 'sQ') and o.key[1] >= start(16) and k_ == 3: continue
            keep.append(o)
            if k_ >= 0: o.est = max(o.est, cuts[k_] + 1); o.lo = cuts[k_] + 1
            if k_ <= 2: o.hi = cuts[k_ + 1] - 1
            if pin and 0 <= k_ <= 2: o.fixed = pin[cls(o)] + cuts[k_]
        P.ops = keep
    P.cuts = cuts
    P.meta = dict(T=T, sg=sg, NM=NM, Bg=Bg, nstamp=nstamp[0], units=units, qk0=qk0, pv0=pv0, first=first)
    return P
def cls(o): return (o.key[0], o.key[1] % 16) + tuple(o.key[2:])
sC4K = 38
Cfg.STAGE = True

def stamp_out(n):
    o = []; e = o.append
    r = sSTAMP + 2 * n
    e("    s_waitcnt vmcnt(0)")
    e(f"    s_memrealtime s[{r}:{r+1}]")
    e("    s_load_dwordx2 s[4:5], s[0:1], 40")
    e("    s_waitcnt lgkmcnt(0)")
    e("    s_mov_b32 s6, 0x10000000")
    e("    s_mov_b32 s7, 0x20000")
    e(f"    s_lshl_b32 s40, s2, 2")
    e(f"    s_add_u32 s40, s40, s{sWV}")
    e(f"    s_lshl_b32 s40, s40, 8")
    e(f"    v_mov_b32 v8, 0")
    for i in range(n + 1):
        e(f"    v_mov_b32 v9, s{sSTAMP + 2*i}")
        e(f"    buffer_store_dword v9, v8, s[4:7], s40 offen offset:{4*i}")
    return "\n".join(o) + "\n"

def generate(c, verbose=True):
    P = build_prog(c)
    P.deps(); P.schedule()
    if c.LOOP:
        cuts = P.cuts
        tstar = {}
        for o in P.ops:
            if o.key is None or o.kind == 'mfma' or o.key[0] in ('W', 'ldK', 'sK', 'stamp'): continue
            if o.gap > cuts[1]: tstar[cls(o)] = min(tstar.get(cls(o), INF), o.key[1])
        where = {o.key: o.gap for o in P.ops if o.key and o.key[0] == 'stamp'}
        def seg(o):
            if o.key[0] == 'stamp': return -1 if where[o.key] < cuts[0] else 3
            if cls(o) not in tstar: return -1
            return max(-1, min(3, (o.key[1] - tstar[cls(o)]) // 16 + 1))
        P = build_prog(c, seg); P.deps(); P.schedule()
        pins = [{cls(o): o.gap - cuts[k] for o in P.ops if o.key and o.kind not in ('mfma', 'bar', 'br') and o.fixed is None and seg(o) == k} for k in range(3)]
        assert pins[0].keys() == pins[1].keys() == pins[2].keys(), (set(pins[0]) ^ set(pins[1]), set(pins[2]) ^ set(pins[1]))
        if verbose: print("trip schedules differ:", sum(pins[0][k] != pins[1][k] for k in pins[0]), sum(pins[2][k] != pins[1][k] for k in pins[0]), file=sys.stderr)
        P = build_prog(c, seg, pins[2]); P.deps(); P.schedule()
    seq = P.linear()
    def unify(seq, d, comb):
        if not c.LOOP: return d
        br = [i for i, o in enumerate(seq) if o.kind == 'br']
        n = br[1] - br[0]; assert br[2] - br[1] == n and br[3] - br[2] == n
        for i in range(1, n + 1):
            assert seq[br[0] + i].text == seq[br[1] + i].text == seq[br[2] + i].text, (i, seq[br[0] + i], seq[br[1] + i], seq[br[2] + i])
            x = [d[b + i] for b in br[:3] if b + i in d]
            if x:
                y = x[0]
                for z in x[1:]: y = comb(y, z)
                for b in br[:3]: d[b + i] = y
        return d
    mn = lambda a, b: a if b is None else (b if a is None else min(a, b))
    seq = with_waits(seq, unify(seq, insert_waits(seq, c.LDS), lambda a, b: [mn(a[0], b[0]), mn(a[1], b[1])]))
    check_waits(seq)
    seq = with_nops(seq, unify(seq, hazards(seq), max))
    assert not hazards(seq)
    unify(seq, {}, None)
    per = estimate(seq)
    M = P.meta
    if verbose:
        tot = sum(per.values())
        row = [sum(per[g] for g in range(M['sg'](t), M['sg'](t + 1) + (1 if t == M['T'] - 1 else 0))) for t in range(M['T'])]
        print("est cycles", tot, "prologue", per[-1], "mfma", 16 * M['NM'], "bytes", sum(isize(o.text) for o in seq), file=sys.stderr)
        print("per step:", row, file=sys.stderr)
        print("nops:", sum(o.kind == 'nop' for o in seq), "waits:", sum(o.kind == 'wait' for o in seq), file=sys.stderr)
    a, b = setup(c.lo_exp, c.hi_exp)
    b += f"    s_movk_i32 s{sC4K}, 0x1000\n"
    ns = M['nstamp']
    if c.STAMPS:
        r = sSTAMP + 2 * ns
        a = f"    s_memrealtime s[{r}:{r+1}]\n" + a
    if c.CPF:
        pf = ["    s_getpc_b64 s[46:47]", "L_pc:", "    v_lshlrev_b32 v15, 7, v0"]
        for i in range((c.CPF + 31) // 32):
            pf += [f"    v_min_u32 v15, L_fb-L_pc, v15", "    global_load_dword v14, v15, s[46:47]", "    v_add_u32 v15, 0x8000, v15"]
        a = a.replace("    v_readfirstlane_b32", "\n".join(pf) + "\n    v_readfirstlane_b32", 1)
    if c.LOOP:
        br = [i for i, o in enumerate(seq) if o.kind == 'br']
        seq = seq[:br[1] + 1] + seq[br[3] + 1:]
        if verbose: print("code bytes", sum(isize(o.text) for o in seq), file=sys.stderr)
    body = []
    for o in seq:
        if o.text == "@LOOP": body.append("L_loop:")
        elif o.text == "@SETUP2": body.append(b.rstrip("\n"))
        else: body.append("    " + o.text)
    s = HEADER.format(name=NAME) + a + "\n".join(body) + "\n"
    if c.FORCE: s += f"    s_or_b32 s{sFLAG}, s{sFLAG}, {c.FORCE:#x}\n"
    if c.STAMPS: s += stamp_out(ns + 1)
    s += fallback() + FOOTER.format(name=NAME)
    return s

if __name__ == "__main__":
    out = sys.argv[1]
    c = Cfg()
    for kv in sys.argv[2:]:
        k, v = kv.split("=", 1); assert hasattr(c, k), k
        setattr(c, k, eval(v))
    open(out, "w").write(generate(c))
```
